```python
import torch

def _softmax(x, axis=-1):
    return torch.softmax(x, dim=axis)
def _gelu(x):
    return torch.nn.functional.gelu(x, approximate="tanh")
def _silu(x):
    return torch.nn.functional.silu(x)
def _sigmoid(x):
    return torch.sigmoid(x)
def _layernorm(x, axis=-1, eps=1e-5):
    m = x.mean(dim=axis, keepdim=True)
    v = x.var(dim=axis, keepdim=True, unbiased=False)
    return (x - m) / torch.sqrt(v + eps)
def _scatter_add(tgt, idx, src, axis=0):
    return tgt.clone().index_add_(axis, idx, src)
def _segment_sum(src, seg, n):
    out = torch.zeros((n,) + src.shape[1:], dtype=src.dtype)
    return out.index_add_(0, seg, src)
def _pad(x, pw):
    flat = tuple(v for pair in reversed(pw) for v in pair)
    return torch.nn.functional.pad(x, flat)

kernel_name = 'sequential_preLN__sliding_local_dilated__glu_gated_reglu__prompt'

def setup_inputs():

    _w = (lambda a: (lambda t: t.to(torch.bfloat16) if t.is_floating_point() else t)(torch.as_tensor(a)))
    def _A_setup():
        B, S, D = 1, 2048, 448
        return {
            "x": _w((lambda *s: torch.randn(*s, dtype=torch.bfloat16) * 0.05)(B, S, D)),
            "wqkv": _w((lambda *s: torch.randn(*s, dtype=torch.bfloat16) * 0.05)(D, 3 * D)),
            "wo": _w((lambda *s: torch.randn(*s, dtype=torch.bfloat16) * 0.05)(D, D)),
        }
    _A_in = _A_setup()

    def _B_setup():
        B, S, D, F = 1, 2048, 448, 1792
        return {
            "x": _w((lambda *s: torch.randn(*s, dtype=torch.bfloat16) * 0.05)(B, S, D)),
            "W_gate": _w((lambda *s: torch.randn(*s, dtype=torch.bfloat16) * 0.8)(D, F) * (2.0 / D) ** 0.5),
            "W_up": _w((lambda *s: torch.randn(*s, dtype=torch.bfloat16) * 0.8)(D, F) * (2.0 / D) ** 0.5),
            "W_down": _w((lambda *s: torch.randn(*s, dtype=torch.bfloat16) * 0.8)(F, D) * (1.0 / F) ** 0.5),
        }
    _B_in = _B_setup()

    return {
        "A_x": _A_in["x"],
        "A_wqkv": _A_in["wqkv"],
        "A_wo": _A_in["wo"],
        "B_x": _B_in["x"],
        "B_W_gate": _B_in["W_gate"],
        "B_W_up": _B_in["W_up"],
        "B_W_down": _B_in["W_down"],
    }

def reference(A_x, A_wqkv, A_wo, B_x, B_W_gate, B_W_up, B_W_down):
    def _A_ref(x, wqkv, wo):
        B, S, D = x.shape
        H = 16; Dh = D // H
        W, dil = 8, 2
        qkv = (lambda x, *d: x.permute(*d))((x @ wqkv).reshape(B, S, 3, H, Dh), 2, 0, 3, 1, 4)
        q, k, v = qkv[0], qkv[1], qkv[2]
        scale = Dh ** -0.5
        pos = torch.arange(S)
        off = torch.arange(W) * dil
        idx = pos[:, None] - off[None, :]
        mask = idx >= 0
        idx_c = torch.where(mask, idx, 0).reshape(-1)
        kg = k[:, :, idx_c, :].reshape(B, H, S, W, Dh)
        vg = v[:, :, idx_c, :].reshape(B, H, S, W, Dh)
        logits = torch.einsum("bhsd,bhswd->bhsw", q, kg) * scale
        logits = torch.where(mask[None, None, :, :], logits, -1e9)
        attn = _softmax(logits, axis=-1)
        o = torch.einsum("bhsw,bhswd->bhsd", attn, vg)
        return (lambda x, *d: x.permute(*d))(o, 0, 2, 1, 3).reshape(B, S, D) @ wo

    def _B_ref(x, W_gate, W_up, W_down):
        gate = torch.einsum("bsd,df->bsf", x, W_gate)
        up = torch.einsum("bsd,df->bsf", x, W_up)
        gate = gate * (lambda x, dt: x.to(dt))(gate > 0, gate.dtype)
        h = gate * up
        return torch.einsum("bsf,fd->bsd", h, W_down)

    x = A_x
    h = x + _A_ref(_layernorm(x, axis=-1), A_wqkv, A_wo)
    h2 = h + _B_ref(_layernorm(h, axis=-1), B_W_gate, B_W_up, B_W_down)
    return h2
```

```python
import re

REG_RE = re.compile(r"\b([vas])\[(\d+):(\d+)\]|\b([vas])(\d+)\b|\b(vcc|exec|m0)\b")
TRANS = ("v_exp_f32", "v_log_f32", "v_rcp_f32", "v_rsq_f32", "v_sqrt_f32", "v_sin_f32", "v_cos_f32")


def regs_of(tok):
    out = set()
    for m in REG_RE.finditer(tok):
        if m.group(1):
            for i in range(int(m.group(2)), int(m.group(3)) + 1):
                out.add((m.group(1), i))
        elif m.group(4):
            out.add((m.group(4), int(m.group(5))))
        else:
            out.add((m.group(6), 0))
    return out


def split_ops(s):
    ops, depth, cur = [], 0, ""
    for ch in s:
        if ch == "[":
            depth += 1
        if ch == "]":
            depth -= 1
        if ch == "," and depth == 0:
            ops.append(cur.strip())
            cur = ""
        else:
            cur += ch
    if cur.strip():
        ops.append(cur.strip())
    return ops


class Ins:
    __slots__ = ("text", "op", "kind", "dst", "src", "A", "B", "C", "passes", "ws", "label", "target", "wide_store", "data")

    def __init__(self, text):
        self.text = text
        self.label = None
        self.target = None
        self.A = self.B = self.C = set()
        self.passes = 0
        self.ws = 1
        self.wide_store = False
        self.data = set()
        t = text.split(";")[0].strip()
        if t.endswith(":"):
            self.kind = "label"
            self.label = t[:-1]
            self.op = ""
            self.dst = set()
            self.src = set()
            self.ws = 0
            return
        parts = t.split(None, 1)
        op = parts[0]
        self.op = op
        rest = parts[1] if len(parts) > 1 else ""
        rest_r = re.sub(r"\b(op_sel|op_sel_hi|neg_lo|neg_hi):\[[^\]]*\]", "", rest)
        ops = split_ops(rest_r)
        R = [regs_of(o) for o in ops]
        allr = set().union(*R) if R else set()
        dst, src = set(), set()
        if op.startswith("v_mfma"):
            self.kind = "mfma"
            dst = R[0]
            self.A, self.B, self.C = R[1], R[2], R[3]
            src = R[1] | R[2] | R[3]
            self.passes = 8 if "32x32x16" in op else 4
        elif op.startswith("v_"):
            self.kind = "valu"
            if "swap" in op:
                dst = allr
                src = allr
            elif op.startswith(("v_fmac", "v_pk_fmac", "v_dot2c")):
                dst = R[0]
                src = allr
            elif op.startswith(("v_add_co", "v_addc_co", "v_sub_co", "v_subb_co")):
                dst = R[0] | R[1]
                src = set().union(*R[2:])
            else:
                dst = R[0]
                src = set().union(*R[1:]) if len(R) > 1 else set()
            if "_dpp" in op or "row_" in rest or "quad_perm" in rest:
                src = src | dst
        elif op.startswith("ds_read") or op.startswith("ds_bpermute") or op.startswith("ds_swizzle"):
            self.kind = "ds"
            dst = R[0]
            src = set().union(*R[1:])
        elif op.startswith("ds_"):
            self.kind = "ds"
            src = allr
        elif op.startswith("buffer_load") or op.startswith("global_load"):
            self.kind = "vm"
            if re.search(r"\blds\b", rest) or "_lds_" in op:
                src = allr | {("m0", 0)}
                self.kind = "dma"
            else:
                dst = R[0]
                src = set().union(*R[1:])
        elif op.startswith("buffer_store") or op.startswith("buffer_atomic"):
            self.kind = "vm"
            src = allr
            if "x4" in op or "x3" in op:
                self.wide_store = True
                self.data = R[0]
        elif op.startswith("s_load") or op.startswith("s_memtime") or op.startswith("s_memrealtime"):
            self.kind = "smem"
            dst = R[0]
            src = set().union(*R[1:]) if len(R) > 1 else set()
        elif op.startswith("s_"):
            self.kind = "salu"
            if op == "s_nop":
                self.ws = int(rest, 0) + 1
            elif op.startswith(("s_cbranch", "s_branch")):
                self.kind = "branch"
                self.target = rest.strip()
                if "vcc" in op:
                    src = {("vcc", 0)}
            elif op.startswith(("s_cmp", "s_waitcnt", "s_barrier", "s_endpgm", "s_setprio", "s_sleep", "s_bitcmp")):
                src = allr
            elif "saveexec" in op:
                dst = R[0] | {("exec", 0)}
                src = set().union(*R[1:])
            else:
                dst = R[0]
                src = set().union(*R[1:]) if len(R) > 1 else set()
        else:
            raise ValueError("unknown op " + text)
        self.dst, self.src = dst, src


def is_sreg(r):
    return r[0] in ("s", "vcc")


def is_vreg(r):
    return r[0] in ("v", "a")


def need_ws(p, c):
    n = 0
    if p.kind == "valu":
        vd = {r for r in p.dst if is_vreg(r)}
        sd = {r for r in p.dst if is_sreg(r)}
        if c.kind == "mfma" and vd & c.src:
            n = max(n, 2)
        if c.kind == "valu":
            if vd & c.src:
                if c.op.startswith(("v_readfirstlane", "v_readlane")):
                    n = max(n, 1)
                if c.op.startswith("v_permlane"):
                    n = max(n, 2)
                if "_dpp" in c.op or "row_" in c.text or "quad_perm" in c.text:
                    n = max(n, 2)
                if p.op in TRANS and c.op not in TRANS:
                    n = max(n, 1)
            if sd & c.src:
                n = max(n, 4 if c.op.startswith(("v_readlane", "v_writelane")) else 2)
        if c.kind in ("vm", "dma") and sd & c.src:
            n = max(n, 5)
        if c.kind == "branch" and sd & c.src:
            n = max(n, 5)
        if c.kind in ("salu", "smem") and sd & c.src:
            n = max(n, 1)
    if p.kind == "mfma":
        big = p.passes == 8
        if c.kind == "mfma":
            if p.dst & (c.A | c.B):
                n = max(n, 12 if big else 8)
            if p.dst & c.C:
                if not (p.dst == c.C and p.passes == c.passes):
                    n = max(n, 10 if big else 6)
            elif p.dst & c.dst:
                n = max(n, 12 if big else 8)
        elif c.kind in ("valu", "vm", "ds", "dma"):
            if p.dst & (c.src | c.dst):
                n = max(n, 12 if big else 8)
            if c.kind == "valu" and p.C & c.dst:
                n = max(n, 7 if big else 3)
    if p.kind == "salu" and ("m0", 0) in p.dst and c.kind == "dma":
        n = max(n, 1)
    if p.wide_store and p.data & c.dst:
        n = max(n, 2 if c.kind in ("valu", "mfma") else 1)
    return n


class Asm:
    def __init__(self):
        self.ins = []
        self.pl = []
        self.pv = []
        self.snap = {}
        self.tok = 0
        self.nlabel = 0

    def raw(self, s):
        self.ins.append(s)

    def comment(self, s):
        self.ins.append("; " + s)

    def newlabel(self, base="L"):
        self.nlabel += 1
        return "%s_%d" % (base, self.nlabel)

    def reset_state(self):
        self.pl, self.pv, self.snap = [], [], {}

    def _required_nops(self, c, idx, lst, branches):
        best = 0
        stack = [(idx - 1, 0)]
        seen = set()
        while stack:
            i, d = stack.pop()
            while i >= 0 and d < 14:
                if (i, d) in seen:
                    break
                seen.add((i, d))
                p = lst[i]
                if isinstance(p, str):
                    if p.startswith(".") and "kernel_start" in p:
                        break
                    i -= 1
                    continue
                if p.kind == "label":
                    for b in branches.get(p.label, ()):
                        stack.append((b, d))
                    i -= 1
                    j = i
                    while j >= 0 and isinstance(lst[j], str):
                        j -= 1
                    if j >= 0 and lst[j].op in ("s_branch", "s_endpgm"):
                        break
                    continue
                n = need_ws(p, c)
                if n > d:
                    best = max(best, n - d)
                d += p.ws
                i -= 1
        return best

    def _branches(self, lst):
        br = {}
        for i, p in enumerate(lst):
            if not isinstance(p, str) and p.kind == "branch":
                br.setdefault(p.target, []).append(i)
        return br

    def _emit(self, ins):
        if not hasattr(self, "_br"):
            self._br = {}
        n = self._required_nops(ins, len(self.ins), self.ins, self._br) if ins.kind != "label" else 0
        while n > 0:
            k = min(n, 16)
            self.ins.append(Ins("s_nop %d" % (k - 1)))
            n -= k
        if ins.kind == "branch":
            self._br.setdefault(ins.target, []).append(len(self.ins))
        self.ins.append(ins)

    @staticmethod
    def _count_after(lst, i):
        return sum(1 for e in lst[i + 1:] if not e["maybe"])

    @staticmethod
    def _retire(lst, n):
        if n == 0:
            return []
        cnt = 0
        for i in range(len(lst) - 1, -1, -1):
            if not lst[i]["maybe"]:
                cnt += 1
                if cnt == n:
                    return lst[i:]
        return lst

    def waitcnt(self, vm=None, lgkm=None):
        parts = []
        if vm is not None:
            vm = min(vm, 63)
            parts.append("vmcnt(%d)" % vm)
            self.pv = self._retire(self.pv, vm)
        if lgkm is not None:
            lgkm = min(lgkm, 15)
            if any(e["smem"] for e in self.pl):
                lgkm = 0
            parts.append("lgkmcnt(%d)" % lgkm)
            self.pl = self._retire(self.pl, lgkm)
        self._emit(Ins("s_waitcnt " + " ".join(parts)))

    def wait_tok(self, tok, lgkm=None):
        idx = [i for i, e in enumerate(self.pv) if e["tok"] <= tok]
        vm = self._count_after(self.pv, idx[-1]) if idx else None
        if vm is None and lgkm is None:
            return
        self.waitcnt(vm=vm, lgkm=lgkm)

    def I(self, text, maybe=False):
        toks = []
        for line in text.split("\n"):
            line = line.strip()
            if not line:
                continue
            if line.startswith(";"):
                self.ins.append(line)
                continue
            toks.append(self._I1(line, maybe))
        return toks[-1] if toks else None

    def _I1(self, text, maybe):
        ins = Ins(text)
        if ins.op == "s_waitcnt":
            vm = re.search(r"vmcnt\((\d+)\)", text)
            lg = re.search(r"lgkmcnt\((\d+)\)", text)
            self.waitcnt(int(vm.group(1)) if vm else None, int(lg.group(1)) if lg else None)
            return None
        if ins.kind == "label":
            if ins.label in self.snap:
                for (sl, sv) in self.snap.pop(ins.label):
                    def merge(old, cur):
                        ids = {id(e) for e in old}
                        extra = [dict(e, maybe=True) for e in cur if id(e) not in ids]
                        return list(old) + extra
                    self.pl = merge(sl, self.pl)
                    self.pv = merge(sv, self.pv)
            self._emit(ins)
            return None
        touched = ins.src | ins.dst
        vm = lg = None
        for i, e in enumerate(self.pv):
            if e["dst"] & touched:
                vm = self._count_after(self.pv, i)
        for i, e in enumerate(self.pl):
            if e["dst"] & touched:
                lg = self._count_after(self.pl, i)
        if vm is not None or lg is not None:
            self.waitcnt(vm, lg)
        self._emit(ins)
        if ins.kind == "branch":
            self.snap.setdefault(ins.target, []).append((list(self.pl), list(self.pv)))
        if ins.kind in ("vm", "dma"):
            self.tok += 1
            self.pv.append(dict(dst=ins.dst, maybe=maybe, tok=self.tok))
            return self.tok
        if ins.kind == "ds":
            self.pl.append(dict(dst=ins.dst, maybe=maybe, smem=False))
        if ins.kind == "smem":
            self.pl.append(dict(dst=ins.dst, maybe=maybe, smem=True))
        return None

    def verify(self):
        br = self._branches(self.ins)
        bad = []
        for i, p in enumerate(self.ins):
            if isinstance(p, str) or p.kind == "label":
                continue
            n = self._required_nops(p, i, self.ins, br)
            if n:
                bad.append((i, p.text, n))
        return bad

    def text(self):
        out = []
        for p in self.ins:
            if isinstance(p, str):
                if "kernel_start" in p and p.startswith("."):
                    continue
                out.append(p)
            elif p.kind == "label":
                out.append(p.text)
            else:
                out.append("    " + p.text)
        return "\n".join(out) + "\n"


class RegAlloc:
    def __init__(self, kind, lo, hi):
        self.kind, self.lo, self.hi = kind, lo, hi
        self.cur = lo
        self.max = lo

    def alloc(self, n=1, align=None):
        if align is None:
            align = 1 if n == 1 else (2 if n < 4 else 4)
        self.cur = (self.cur + align - 1) // align * align
        r = self.cur
        self.cur += n
        assert self.cur <= self.hi, "out of %s regs" % self.kind
        self.max = max(self.max, self.cur)
        return r

    def mark(self):
        return self.cur

    def release(self, m):
        self.cur = m


def vr(r, n=1, k="v"):
    return "%s%d" % (k, r) if n == 1 else "%s[%d:%d]" % (k, r, r + n - 1)


def ar(r, n=1):
    return vr(r, n, "a")


def sr(r, n=1):
    return vr(r, n, "s")
```

```python
import sys, math, struct
from asmgen import *

NAME = "sequential_preLN__sliding_local_dilated__glu_gated_reglu__prompt"
O_OFF, H_OFF, HID_OFF = 0, 2 << 20, 4 << 20
WS_BYTES = 16 << 20
LDS = 163840

sX, sWQ, sWO, sWG, sWU, sWD, sOUT, sWS = 8, 12, 16, 20, 24, 28, 32, 36
SRD = {"x": (sX, 0, 1835008), "wq": (sWQ, 8, 1204224), "wo": (sWO, 16, 401408), "wg": (sWG, 32, 1605632),
       "wu": (sWU, 40, 1605632), "wd": (sWD, 48, 1605632), "out": (sOUT, 56, 1835008), "ws": (sWS, 72, WS_BYTES)}
sW, sG, sI = 40, 41, 42
vLane = 1


def f32(x):
    return "0x%08x" % struct.unpack("<I", struct.pack("<f", x))[0]


def srd(n):
    return sr(n, 4)


def prologue(a, name, bufs, nwg_i):
    a.raw(".globl %s\n.p2align 8\n.type %s,@function" % (name, name))
    a.raw(".kernel_start")
    a.reset_state()
    a.raw(name + ":")
    for b in bufs:
        r, off, n = SRD[b]
        a.I("s_load_dwordx2 %s, s[0:1], %d" % (sr(r, 2), off))
    a.I("s_cmp_ge_u32 s2, %d" % (nwg_i * 8))
    a.I("s_cbranch_scc1 %s_end" % name)
    a.I("v_lshrrev_b32 v2, 6, v0")
    a.I("v_and_b32 v%d, 63, v0" % vLane)
    a.I("v_readfirstlane_b32 s%d, v2" % sW)
    a.I("s_and_b32 s%d, s2, 7" % sG)
    a.I("s_lshr_b32 s%d, s2, 3" % sI)
    for b in bufs:
        r, off, n = SRD[b]
        a.I("s_mov_b32 s%d, %d" % (r + 2, n))
        a.I("s_mov_b32 s%d, 0x20000" % (r + 3))


def epilogue(a, name):
    a.I("%s_end:" % name)
    a.I("s_endpgm")


def dma(a, voff, srdn, soff, m0expr, flags="", maybe=False):
    a.I("s_add_u32 m0, s%d, %d" % m0expr)
    return a.I("buffer_load_dwordx4 v%d, %s, %s offen %s lds" % (voff, srd(srdn), soff, flags), maybe=maybe)


def phase1(a, ST=""):
    V = RegAlloc("v", 2, 256)
    SLOT = 34816
    SCR = 4 * SLOT
    t0, t1, t2, t3 = [V.alloc() for _ in range(4)]
    vdW = [[V.alloc() for e in range(2)] for m in range(3)]
    vdX = [V.alloc() for j in range(3)]
    vXA = [[V.alloc() for ks in range(2)] for hi in range(2)]
    vWA = [[V.alloc() for ft in range(2)] for hi in range(2)]
    ones = V.alloc(4)
    sMT, sHP, sR0, sHS, sA, sKB, sOX, sOW, sLX, sLW, sT = 44, 45, 46, 47, 48, 49, 50, 51, 52, 53, 54
    L = vLane
    a.I(f"""
    s_lshr_b32 s{sMT}, s{sI}, 3
    s_and_b32 s{sHP}, s{sI}, 7
    s_lshl_b32 s{sR0}, s{sG}, 8
    s_lshl_b32 s{sT}, s{sMT}, 6
    s_add_u32 s{sR0}, s{sR0}, s{sT}
    s_and_b32 s{sHS}, s{sW}, 1
    s_lshr_b32 s{sA}, s{sW}, 1
    s_cmp_eq_u32 s{sG}, 7
    s_cselect_b32 s{sKB}, 0, s{sG}
    s_lshl_b32 s{sOX}, s{sKB}, 7
    s_mul_i32 s{sOW}, s{sKB}, 172032
    s_mul_i32 s{sT}, s{sHP}, 112
    s_add_u32 s{sOW}, s{sOW}, s{sT}
    s_lshl_b32 s{sLX}, s{sW}, 10
    s_lshl_b32 s{sLW}, s{sW}, 11
    v_lshrrev_b32 v{t0}, 3, v{L}          ; r8
    v_and_b32 v{t1}, 7, v{L}              ; p8
    v_and_b32 v{t2}, 2, v{t0}             ; 2*bit1(r8)
    v_xor_b32 v{t2}, v{t2}, v{t1}
    v_lshlrev_b32 v{t2}, 4, v{t2}
    s_lshl_b32 s{sT}, s{sW}, 4
    v_add_u32 v{t3}, s{sT}, v{t0}         ; 16w + r8
    v_mul_u32_u24 v{t3}, 2688, v{t3}
    v_add_u32 v{vdW[0][0]}, v{t3}, v{t2}
    v_xor_b32 v{t2}, 64, v{t2}
    v_add3_u32 v{vdW[0][1]}, v{t3}, v{t2}, 0
    v_add_u32 v{vdW[0][1]}, {8*2688}, v{vdW[0][1]}
    v_add_u32 v{vdW[1][0]}, 896, v{vdW[0][0]}
    v_add_u32 v{vdW[1][1]}, 896, v{vdW[0][1]}
    v_add_u32 v{vdW[2][0]}, 1792, v{vdW[0][0]}
    v_add_u32 v{vdW[2][1]}, 1792, v{vdW[0][1]}
    v_lshrrev_b32 v{t2}, 1, v{t0}
    s_lshl_b32 s{sT}, s{sHS}, 2
    v_or_b32 v{t2}, s{sT}, v{t2}          ; f
    v_xor_b32 v{t2}, v{t2}, v{t1}
    v_lshlrev_b32 v{t2}, 4, v{t2}
    s_lshl_b32 s{sT}, s{sW}, 3
    s_add_u32 s{sT}, s{sT}, s{sR0}
    s_sub_u32 s{sT}, s{sT}, 16
    v_add_u32 v{t3}, s{sT}, v{t0}
    """)
    for j in range(3):
        a.I(f"""
        v_add_u32 v{vdX[j]}, {32*j}, v{t3}
        v_max_i32 v{vdX[j]}, 0, v{vdX[j]}
        v_mul_u32_u24 v{vdX[j]}, 896, v{vdX[j]}
        v_add_u32 v{vdX[j]}, v{vdX[j]}, v{t2}
        """)

    toks = {}

    def issue(it):
        base = (it % 4) * SLOT
        for j in range(2):
            dma(a, vdX[j], sX, f"s{sOX}", (sLX, base + j * 4096))
        lab = a.newlabel("P1skip")
        a.I(f"s_cmp_ge_u32 s{sW}, 2\ns_cbranch_scc1 {lab}")
        dma(a, vdX[2], sX, f"s{sOX}", (sLX, base + 8192), maybe=True)
        a.I(lab + ":")
        for e in range(2):
            for m in range(3):
                tk = dma(a, vdW[m][e], sWQ, f"s{sOW}", (sLW, base + 10240 + m * 8192 + e * 1024))
        toks[it] = tk
        a.I(f"""
        s_add_u32 s{sKB}, s{sKB}, 1
        s_add_u32 s{sOX}, s{sOX}, 128
        s_add_u32 s{sOW}, s{sOW}, 172032
        s_cmp_eq_u32 s{sKB}, 7
        s_cselect_b32 s{sT}, {7*128}, 0
        s_sub_u32 s{sOX}, s{sOX}, s{sT}
        s_cmp_eq_u32 s{sKB}, 7
        s_cselect_b32 s{sT}, {7*172032}, 0
        s_sub_u32 s{sOW}, s{sOW}, s{sT}
        """)

    for it in range(4):
        issue(it)

    a.I(f"""
    v_and_b32 v{t0}, 15, v{L}             ; row16
    v_lshrrev_b32 v{t1}, 4, v{L}          ; G
    v_lshrrev_b32 v{t2}, 1, v{t0}
    v_xor_b32 v{t2}, v{t2}, v{t1}
    v_lshlrev_b32 v{t2}, 4, v{t2}
    v_lshl_add_u32 v{t2}, v{t0}, 7, v{t2}
    s_lshl_b32 s{sT}, s{sA}, 12
    v_add_u32 v{vXA[0][0]}, s{sT}, v{t2}
    v_xor_b32 v{vXA[0][1]}, 64, v{vXA[0][0]}
    v_add_u32 v{vXA[1][0]}, {2*SLOT}, v{vXA[0][0]}
    v_add_u32 v{vXA[1][1]}, {2*SLOT}, v{vXA[0][1]}
    ; W read
    v_and_b32 v{t0}, 3, v{L}              ; c4
    v_lshlrev_b32 v{t0}, 3, v{t0}
    s_mul_i32 s{sT}, s{sHS}, 56
    v_add_u32 v{t0}, s{sT}, v{t0}         ; b (ft=0)
    v_bfe_u32 v{t2}, v{L}, 2, 2           ; r4
    v_and_b32 v{t3}, 2, v{t2}
    v_lshlrev_b32 v{t2}, 7, v{t2}
    v_lshl_add_u32 v{t2}, v{t1}, 10, v{t2}  ; G*1024 + r4*128
    v_and_b32 v{t1}, 1, v{t1}
    v_lshl_or_b32 v{t3}, v{t1}, 2, v{t3}  ; 2*bit1(r4) + 4*(G&1)
    v_lshlrev_b32 v{t3}, 4, v{t3}         ; *16
    v_xor_b32 v{t1}, v{t0}, v{t3}
    v_add3_u32 v{vWA[0][0]}, v{t1}, v{t2}, 0
    v_add_u32 v{t0}, 32, v{t0}
    v_xor_b32 v{t1}, v{t0}, v{t3}
    v_add3_u32 v{vWA[0][1]}, v{t1}, v{t2}, 0
    v_add_u32 v{vWA[0][0]}, 10240, v{vWA[0][0]}
    v_add_u32 v{vWA[0][1]}, 10240, v{vWA[0][1]}
    v_add_u32 v{vWA[1][0]}, {2*SLOT}, v{vWA[0][0]}
    v_add_u32 v{vWA[1][1]}, {2*SLOT}, v{vWA[0][1]}
    """)
    for k in range(4):
        a.I(f"v_mov_b32 v{ones+k}, 0x3f803f80")

    Q = {(t, ft): V.alloc(4) for t in (1, 2) for ft in range(2)}
    K = {(t, ft): V.alloc(4) for t in range(3) for ft in range(2)}
    Vv = {(t, ft): V.alloc(4) for t in range(3) for ft in range(2)}
    CS = {(m, ft): V.alloc(4) for m in range(3) for ft in range(2)}
    S1 = [V.alloc(4) for t in range(3)]
    GR = [V.alloc(4) for t in range(3)]
    mk = V.mark()
    XF = [[V.alloc(4) for t in range(3)] for s in range(2)]
    WF = [{(m, ft): V.alloc(4) for m in range(3) for ft in range(2)} for s in range(2)]

    def mf(d, A, B, first):
        a.I("v_mfma_f32_16x16x32_bf16 %s, %s, %s, %s" % (vr(d, 4), vr(A, 4), vr(B, 4), "0" if first else vr(d, 4)))

    def reads(it, ks):
        hi = (it % 4) // 2
        base = (it % 2) * SLOT
        out = []
        for t in range(3):
            out.append(f"ds_read_b128 {vr(XF[ks][t],4)}, v{vXA[hi][ks]} offset:{base + t*2048}")
        for m in (1, 2, 0):
            for ft in range(2):
                for half in range(2):
                    out.append(f"ds_read_b64_tr_b16 {vr(WF[ks][(m,ft)]+2*half,2)}, v{vWA[hi][ft]} offset:{base + m*8192 + ks*4096 + half*512}")
        return out

    def mfmas(ks, first):
        X, W = XF[ks], WF[ks]
        out = []
        for t in range(3):
            out.append((S1[t], ones, X[t]))
            out.append((GR[t], X[t], X[t]))
        for ft in range(2):
            for t in range(3):
                out.append((K[(t, ft)], W[(1, ft)], X[t]))
            out.append((CS[(1, ft)], W[(1, ft)], ones))
        for ft in range(2):
            for t in range(3):
                out.append((Vv[(t, ft)], X[t], W[(2, ft)]))
            out.append((CS[(2, ft)], ones, W[(2, ft)]))
        for ft in range(2):
            for t in (1, 2):
                out.append((Q[(t, ft)], W[(0, ft)], X[t]))
            out.append((CS[(0, ft)], W[(0, ft)], ones))
        return out

    for it in range(7):
        a.wait_tok(toks[it], lgkm=0)
        a.I("s_barrier")
        r0 = reads(it, 0)
        for r in r0:
            a.I(r)
        if 1 <= it <= 3:
            issue(it + 3)
        r1 = reads(it, 1)
        m0 = mfmas(0, it == 0)
        for n, (d, A, B) in enumerate(m0):
            mf(d, A, B, it == 0)
            if n >= 6 and r1:
                a.I(r1.pop(0))
        for (d, A, B) in mfmas(1, False):
            mf(d, A, B, False)

    V.release(mk)
    sPar, sB1, sCur0, sCur1, sDiag, sBias = 64, 66, 68, 70, 72, 74
    q, G, c0 = t0, t1, t2
    mP = [V.alloc() for _ in range(2)]
    mC = [V.alloc() for _ in range(2)]
    pad = V.alloc()
    vSW, vSL, vSR = V.alloc(), V.alloc(), V.alloc()
    a.I(f"""
    v_and_b32 v{q}, 15, v{L}
    v_lshrrev_b32 v{G}, 4, v{L}
    v_and_b32 v{t3}, 1, v{q}
    v_cmp_eq_u32 {sr(sPar,2)}, 1, v{t3}
    v_lshl_add_u32 v{c0}, v{G}, 2, v{t3}
    v_cmp_le_u32 {sr(sCur0,2)}, v{c0}, v{q}
    v_add_u32 v{c0}, 2, v{c0}
    v_cmp_le_u32 {sr(sCur1,2)}, v{c0}, v{q}
    v_and_b32 v{t3}, 2, v{q}
    v_cmp_eq_u32 {sr(sB1,2)}, 2, v{t3}
    v_lshrrev_b32 v{t3}, 2, v{q}
    v_cmp_eq_u32 {sr(sDiag,2)}, v{t3}, v{G}
    v_mov_b32 v{t3}, 0xffff
    v_mov_b32 v{c0}, 0xffff0000
    v_cndmask_b32 v{t3}, v{t3}, v{c0}, {sr(sPar,2)}
    v_cndmask_b32 v{mP[0]}, v{t3}, 0, {sr(sCur0,2)}
    v_cndmask_b32 v{mP[1]}, v{t3}, 0, {sr(sCur1,2)}
    v_cndmask_b32 v{mC[0]}, 0, v{t3}, {sr(sCur0,2)}
    v_cndmask_b32 v{mC[1]}, 0, v{t3}, {sr(sCur1,2)}
    v_cmp_ne_u32 vcc, 3, v{G}
    s_lshl_b32 s{sT}, s{sW}, 9
    s_add_u32 s{sT}, s{sT}, {SCR}
    v_cndmask_b32 v{pad}, 0, -1, vcc
    v_lshl_add_u32 v{vSL}, v{q}, 2, s{sT}
    v_lshl_add_u32 v{vSR}, v{G}, 4, s{sT}
    s_or_b32 s{sT}, s{sR0}, s{sA}
    s_cmp_eq_u32 s{sT}, 0
    s_cselect_b32 s{sBias}, {f32(-1e30)}, 0
    """)
    nm = [V.alloc() for t in range(3)]
    rs = [V.alloc() for t in range(3)]
    for t in range(3):
        g = GR[t]
        a.I(f"""
        v_cndmask_b32 v{g}, v{g}, v{g+1}, {sr(sPar,2)}
        v_cndmask_b32 v{g+2}, v{g+2}, v{g+3}, {sr(sPar,2)}
        v_mul_f32 v{nm[t]}, {f32(-1.0/448)}, v{S1[t]}
        v_cndmask_b32 v{g}, v{g}, v{g+2}, {sr(sB1,2)}
        v_mul_f32 v{g+1}, v{nm[t]}, v{nm[t]}
        v_mul_f32 v{g}, {f32(1.0/448)}, v{g}
        v_sub_f32 v{g}, v{g}, v{g+1}
        v_max_f32 v{g}, 0, v{g}
        v_add_f32 v{g}, {f32(1e-5)}, v{g}
        v_rsq_f32 v{rs[t]}, v{g}
        """)
    a.I(f"s_mov_b64 exec, {sr(sDiag,2)}")
    for t in range(3):
        a.I(f"ds_write2_b32 v{vSL}, v{nm[t]}, v{rs[t]} offset0:{t*32} offset1:{t*32+16}")
    a.I("s_mov_b64 exec, -1")
    a.waitcnt(lgkm=0)
    PL = [V.alloc(2) for t in range(3)]
    NMR = [V.alloc(4) for t in range(3)]
    RSR = [V.alloc(4) for t in range(3)]
    for t in range(3):
        a.I(f"ds_read2_b32 {vr(PL[t],2)}, v{vSL} offset0:{t*32} offset1:{t*32+16}")
    for t in range(3):
        a.I(f"ds_read_b128 {vr(NMR[t],4)}, v{vSR} offset:{t*128}")
        a.I(f"ds_read_b128 {vr(RSR[t],4)}, v{vSR} offset:{t*128+64}")
    KP = [V.alloc(4) for t in range(3)]
    QP = {t: V.alloc(4) for t in (1, 2)}
    VP = [V.alloc(6, 2) for ft in range(2)]
    QS = {t: V.alloc(2) for t in (1, 2)}

    def norm_lane(acc, cs, pl, mul):
        for k in (0, 2):
            a.I(f"v_pk_fma_f32 {vr(acc+k,2)}, {vr(cs+k,2)}, {vr(pl,2)}, {vr(acc+k,2)} op_sel_hi:[1,0,1]")
        for k in (0, 2):
            a.I(f"v_pk_mul_f32 {vr(acc+k,2)}, {vr(acc+k,2)}, {vr(mul,2)} op_sel:[0,1] op_sel_hi:[1,1]")

    cexp = (28 ** -0.5) * math.log2(math.e)
    for t in range(3):
        for ft in range(2):
            acc = K[(t, ft)]
            norm_lane(acc, CS[(1, ft)], PL[t], PL[t])
            a.I(f"v_cvt_pk_bf16_f32 v{KP[t]+2*ft}, v{acc}, v{acc+1}")
            a.I(f"v_cvt_pk_bf16_f32 v{KP[t]+2*ft+1}, v{acc+2}, v{acc+3}")
    for t in (1, 2):
        a.I(f"v_mul_f32 v{QS[t]+1}, {f32(cexp)}, v{PL[t]+1}")
        for ft in range(2):
            acc = Q[(t, ft)]
            norm_lane(acc, CS[(0, ft)], PL[t], QS[t])
            a.I(f"v_cvt_pk_bf16_f32 v{QP[t]+2*ft}, v{acc}, v{acc+1}")
            a.I(f"v_cvt_pk_bf16_f32 v{QP[t]+2*ft+1}, v{acc+2}, v{acc+3}")
        a.I(f"v_and_b32 v{QP[t]+2}, v{QP[t]+2}, v{pad}")
        a.I(f"v_and_b32 v{QP[t]+3}, v{QP[t]+3}, v{pad}")
    SP = {t: V.alloc(4) for t in (1, 2)}
    SC = {t: V.alloc(4) for t in (1, 2)}
    for t in (1, 2):
        mf(SP[t], KP[t - 1], QP[t], True)
        mf(SC[t], KP[t], QP[t], True)
    for ft in range(2):
        for t in range(3):
            acc = Vv[(t, ft)]
            for k in (0, 2):
                a.I(f"v_pk_fma_f32 {vr(acc+k,2)}, {vr(NMR[t]+k,2)}, {vr(CS[(2,ft)],2)}, {vr(acc+k,2)}")
            for k in (0, 2):
                a.I(f"v_pk_mul_f32 {vr(acc+k,2)}, {vr(acc+k,2)}, {vr(RSR[t]+k,2)}")
            a.I(f"v_cvt_pk_bf16_f32 v{VP[ft]+2*t}, v{acc}, v{acc+1}")
            a.I(f"v_cvt_pk_bf16_f32 v{VP[ft]+2*t+1}, v{acc+2}, v{acc+3}")
    T = (1, 2)
    mx = {t: V.alloc() for t in T}
    tm = {t: V.alloc() for t in T}

    def both(fmt):
        for t in T:
            a.I(fmt.format(p=SP[t], p1=SP[t] + 1, p2=SP[t] + 2, p3=SP[t] + 3, c=SC[t], c1=SC[t] + 1, c2=SC[t] + 2, c3=SC[t] + 3,
                           mx=mx[t], tm=tm[t]))

    P = sr(sPar, 2)
    both("v_cndmask_b32 v{p}, v{p}, v{p1}, " + P)
    both("v_cndmask_b32 v{p2}, v{p2}, v{p3}, " + P)
    both("v_cndmask_b32 v{c}, v{c}, v{c1}, " + P)
    both("v_cndmask_b32 v{c2}, v{c2}, v{c3}, " + P)
    a.I(f"v_add_f32 v{SP[1]}, s{sBias}, v{SP[1]}")
    a.I(f"v_add_f32 v{SP[1]+2}, s{sBias}, v{SP[1]+2}")
    both("v_cndmask_b32 v{p}, v{p}, v{c}, " + sr(sCur0, 2))
    both("v_cndmask_b32 v{p2}, v{p2}, v{c2}, " + sr(sCur1, 2))
    both("v_max_f32 v{mx}, v{p}, v{p2}")
    for sw in ("v_permlane32_swap_b32", "v_permlane16_swap_b32"):
        both("v_mov_b32 v{tm}, v{mx}")
        both(sw + " v{mx}, v{tm}")
        both("v_max_f32 v{mx}, v{mx}, v{tm}")
    both("v_sub_f32 v{p}, v{p}, v{mx}")
    both("v_sub_f32 v{p2}, v{p2}, v{mx}")
    both("v_exp_f32 v{p}, v{p}")
    both("v_exp_f32 v{p2}, v{p2}")
    both("v_add_f32 v{mx}, v{p}, v{p2}")
    for sw in ("v_permlane32_swap_b32", "v_permlane16_swap_b32"):
        both("v_mov_b32 v{tm}, v{mx}")
        both(sw + " v{mx}, v{tm}")
        both("v_add_f32 v{mx}, v{mx}, v{tm}")
    both("v_rcp_f32 v{mx}, v{mx}")
    both("v_mul_f32 v{p}, v{p}, v{mx}")
    both("v_mul_f32 v{p2}, v{p2}, v{mx}")
    both("v_cvt_pk_bf16_f32 v{p}, v{p}, v{p}")
    both("v_cvt_pk_bf16_f32 v{p2}, v{p2}, v{p2}")
    both("v_and_b32 v{c}, v{p}, v%d" % mP[0])
    both("v_and_b32 v{c1}, v{p2}, v%d" % mP[1])
    both("v_and_b32 v{c2}, v{p}, v%d" % mC[0])
    both("v_and_b32 v{c3}, v{p2}, v%d" % mC[1])
    OA = {(t, ft): V.alloc(4) for t in T for ft in range(2)}
    for t in T:
        for ft in range(2):
            mf(OA[(t, ft)], VP[ft] + 2 * (t - 1), SC[t], True)
    a.I(f"""
    v_lshlrev_b32 v{t0}, 4, v{L}
    s_lshr_b32 s{sT}, s{sR0}, 4
    s_lshl_b32 s{sOX}, s{sA}, 1
    s_add_u32 s{sT}, s{sT}, s{sOX}
    s_lshl_b32 s{sT}, s{sT}, 4
    s_lshl_b32 s{sOX}, s{sHP}, 1
    s_add_u32 s{sT}, s{sT}, s{sOX}
    s_add_u32 s{sT}, s{sT}, s{sHS}
    s_lshl_b32 s{sT}, s{sT}, 10
    s_add_u32 s{sOX}, s{sT}, {O_OFF}
    s_add_u32 s{sOW}, s{sT}, {O_OFF + 16384}
    """)
    for t in T:
        o = SP[t]
        for ft in range(2):
            acc = OA[(t, ft)]
            a.I(f"v_cvt_pk_bf16_f32 v{o+2*ft}, v{acc}, v{acc+1}")
            a.I(f"v_cvt_pk_bf16_f32 v{o+2*ft+1}, v{acc+2}, v{acc+3}")
        a.I(f"v_and_b32 v{o+2}, v{o+2}, v{pad}")
        a.I(f"v_and_b32 v{o+3}, v{o+3}, v{pad}")
        a.I(f"buffer_store_dwordx4 {vr(o,4)}, v{t0}, {srd(sWS)}, s{sOX if t == 1 else sOW} offen {ST}")
    return V.max


def lane_tr_addr(a, dst, t0, t1, bytes_extra_sreg, g1_stride, swz_shift, extra_swz_g1=0):
    pass


def mf32(a, d, A, B, C):
    a.I("v_mfma_f32_32x32x16_bf16 %s, %s, %s, %s" % (vr(d, 16), A, B, C))


def unpack8(a, dst, src):
    for k in range(4):
        a.I(f"v_lshlrev_b32 v{dst+2*k}, 16, v{src+k}")
        a.I(f"v_and_b32 v{dst+2*k+1}, 0xffff0000, v{src+k}")


def phase2(a, ST="", LD=""):
    V = RegAlloc("v", 2, 256)
    L = vLane
    OL = 114 * 1024
    t0, t1, t2, t3 = [V.alloc() for _ in range(4)]
    vdW, vLin, vA, vB, vXo = [V.alloc() for _ in range(5)]
    sRT, sCT, sNT, sT, sO, sL = 44, 45, 46, 47, 48, 49
    a.I(f"""
    s_lshr_b32 s{sRT}, s{sI}, 2
    s_lshl_b32 s{sT}, s{sG}, 3
    s_add_u32 s{sRT}, s{sRT}, s{sT}
    s_and_b32 s{sCT}, s{sI}, 3
    s_lshl_b32 s{sNT}, s{sCT}, 2
    s_add_u32 s{sNT}, s{sNT}, s{sW}
    v_lshlrev_b32 v{vLin}, 4, v{L}
    v_lshrrev_b32 v{t0}, 3, v{L}           ; r8
    v_and_b32 v{t1}, 7, v{L}
    v_and_b32 v{t2}, 2, v{t0}
    v_lshlrev_b32 v{t2}, 1, v{t2}          ; 4*bit1(r8)
    v_xor_b32 v{t1}, v{t1}, v{t2}
    v_mul_u32_u24 v{t0}, 896, v{t0}
    v_lshl_add_u32 v{vdW}, v{t1}, 4, v{t0}
    """)
    a.I(f"""
    s_lshl_b32 s{sO}, s{sRT}, 15
    s_lshl_b32 s{sL}, s{sW}, 13
    s_add_u32 s{sO}, s{sO}, s{sL}
    s_add_u32 s{sO}, s{sO}, {O_OFF}
    """)
    a.I(f"s_add_u32 m0, s{sL}, {OL}")
    for hb in range(2):
        if hb:
            a.I(f"s_add_u32 m0, s{sL}, {OL + 4096}\ns_add_u32 s{sO}, s{sO}, 4096")
        for j in range(4):
            a.I(f"buffer_load_dwordx4 v{vLin}, {srd(sWS)}, s{sO} offen offset:{j*1024} {LD} lds")
    a.I(f"""
    s_lshr_b32 s{sT}, s{sW}, 1
    s_mul_i32 s{sL}, s{sT}, {57*1024}
    s_lshl_b32 s{sO}, s{sT}, 7
    s_lshl_b32 s{sT}, s{sCT}, 8
    s_add_u32 s{sO}, s{sO}, s{sT}
    s_and_b32 s{sT}, s{sW}, 1
    s_mul_i32 s{sT}, s{sT}, {8*896}
    s_add_u32 s{sO}, s{sO}, s{sT}
    s_and_b32 s{sT}, s{sW}, 1
    s_lshl_b32 s{sT}, s{sT}, 10
    s_add_u32 s{sL}, s{sL}, s{sT}
    """)
    for n in range(28):
        tk = dma(a, vdW, sWO, f"s{sO}", (sL, n * 2048))
        a.I(f"s_add_u32 s{sO}, s{sO}, {16*896}")
    lab = a.newlabel("P2skip")
    a.I(f"s_bitcmp1_b32 s{sW}, 0\ns_cbranch_scc1 {lab}")
    dma(a, vdW, sWO, f"s{sO}", (sL, 28 * 2048), maybe=True)
    a.I(lab + ":")
    XR = V.alloc(8)
    acc = V.alloc(16)
    a.I(f"""
    v_and_b32 v{t0}, 31, v{L}
    v_lshrrev_b32 v{t1}, 5, v{L}          ; g2
    v_mul_u32_u24 v{vXo}, 896, v{t0}
    v_lshl_add_u32 v{vXo}, v{t1}, 4, v{vXo}
    s_mul_i32 s{sO}, s{sRT}, {32*896}
    s_lshl_b32 s{sT}, s{sNT}, 6
    s_add_u32 s{sO}, s{sO}, s{sT}
    buffer_load_dwordx4 {vr(XR,4)}, v{vXo}, {srd(sX)}, s{sO} offen
    buffer_load_dwordx4 {vr(XR+4,4)}, v{vXo}, {srd(sX)}, s{sO} offen offset:32
    ; B address
    v_lshrrev_b32 v{t2}, 4, v{t0}
    v_lshlrev_b32 v{t2}, 14, v{t2}
    v_and_b32 v{t0}, 15, v{t0}
    v_lshl_add_u32 v{t2}, v{t0}, 4, v{t2}
    v_lshl_add_u32 v{t2}, v{t1}, 8, v{t2}
    v_add_u32 v{vB}, {OL}, v{t2}
    v_bfe_u32 v{t0}, v{L}, 2, 2           ; r4
    v_lshl_add_u32 v{t2}, v{t1}, 2, v{t0}
    v_lshlrev_b32 v{t2}, 7, v{t2}
    v_and_b32 v{t0}, 2, v{t0}
    v_lshlrev_b32 v{t0}, 5, v{t0}         ; 64*bit1
    v_and_b32 v{t1}, 16, v{L}
    v_lshlrev_b32 v{t1}, 1, v{t1}         ; 32*(G&1)
    v_and_b32 v{t3}, 1, v{L}
    v_lshl_or_b32 v{t1}, v{t3}, 4, v{t1}
    v_and_b32 v{t3}, 2, v{L}
    v_lshl_or_b32 v{t1}, v{t3}, 2, v{t1}
    s_and_b32 s{sT}, s{sW}, 1
    s_lshl_b32 s{sT}, s{sT}, 6
    v_or_b32 v{t1}, s{sT}, v{t1}
    v_xor_b32 v{t1}, v{t1}, v{t0}
    s_lshr_b32 s{sT}, s{sW}, 1
    s_mul_i32 s{sT}, s{sT}, {57*1024}
    v_add3_u32 v{vA}, v{t1}, v{t2}, s{sT}
    """)
    unpack8(a, acc, XR)
    unpack8(a, acc + 8, XR + 4)
    a.waitcnt(vm=0)
    a.I("s_barrier")
    end = a.newlabel("P2end")
    a.I(f"s_cmp_ge_u32 s{sNT}, 14\ns_cbranch_scc1 {end}")
    NB = 6
    BF = [V.alloc(4) for _ in range(NB)]

    def rd(s):
        h, e = s >> 1, s & 1
        for j in range(2):
            a.I(f"ds_read_b64_tr_b16 {ar(4*s+2*j,2)}, v{vA} offset:{(28*h+16*j+8*e)*128}")
        a.I(f"ds_read_b128 {vr(BF[s % NB],4)}, v{vB} offset:{h*1024+e*512}")
    for s in range(4):
        rd(s)
    for s in range(32):
        mf32(a, acc, ar(4 * s, 4), vr(BF[s % NB], 4), vr(acc, 16))
        if s + 4 < 32:
            rd(s + 4)
    HP = V.alloc(8)
    a.I(f"""
    s_lshl_b32 s{sO}, s{sRT}, 15
    s_lshl_b32 s{sT}, s{sNT}, 11
    s_add_u32 s{sL}, s{sO}, s{sT}
    s_add_u32 s{sL}, s{sL}, {H_OFF}
    s_lshl_b32 s{sT}, s{sNT}, 8
    s_add_u32 s{sO}, s{sO}, s{sT}
    s_add_u32 s{sO}, s{sO}, {H_OFF + 28672}
    """)
    for k in range(8):
        a.I(f"v_cvt_pk_bf16_f32 v{HP+k}, v{acc+2*k}, v{acc+2*k+1}")
    a.I(f"buffer_store_dwordx4 {vr(HP,4)}, v{vLin}, {srd(sWS)}, s{sL} offen {ST}")
    a.I(f"buffer_store_dwordx4 {vr(HP+4,4)}, v{vLin}, {srd(sWS)}, s{sL} offen offset:1024 {ST}")
    sm, sq = V.alloc(2), V.alloc(2)
    st = V.alloc(2)
    a.I(f"v_pk_add_f32 {vr(sm,2)}, {vr(acc,2)}, {vr(acc+2,2)}")
    a.I(f"v_pk_mul_f32 {vr(sq,2)}, {vr(acc,2)}, {vr(acc,2)}")
    a.I(f"v_pk_fma_f32 {vr(sq,2)}, {vr(acc+2,2)}, {vr(acc+2,2)}, {vr(sq,2)}")
    for k in range(2, 8):
        a.I(f"v_pk_add_f32 {vr(sm,2)}, {vr(sm,2)}, {vr(acc+2*k,2)}")
        a.I(f"v_pk_fma_f32 {vr(sq,2)}, {vr(acc+2*k,2)}, {vr(acc+2*k,2)}, {vr(sq,2)}")
    a.I(f"""
    v_add_f32 v{st}, v{sm}, v{sm+1}
    v_add_f32 v{st+1}, v{sq}, v{sq+1}
    v_mov_b32 v{sm}, v{st}
    v_mov_b32 v{sm+1}, v{st+1}
    v_lshlrev_b32 v{t0}, 3, v{L}
    v_permlane32_swap_b32 v{st}, v{sm}
    v_permlane32_swap_b32 v{st+1}, v{sm+1}
    v_add_f32 v{st}, v{st}, v{sm}
    v_add_f32 v{st+1}, v{st+1}, v{sm+1}
    s_mov_b64 exec, 0xffffffff
    buffer_store_dwordx2 {vr(st,2)}, v{t0}, {srd(sWS)}, s{sO} offen {ST}
    s_mov_b64 exec, -1
    """)
    a.I(end + ":")
    return V.max


def phase3(a, ST="", LD=""):
    V = RegAlloc("v", 2, 256)
    L = vLane
    t0, t1, t2, t3 = [V.alloc() for _ in range(4)]
    vdG, vdU, vLin, vA, vSt = [V.alloc() for _ in range(5)]
    vBs = [V.alloc() for _ in range(3)]
    ones = V.alloc(4)
    sT, sO, sL, sRT, sHO, sFT, sN = 44, 45, 46, 47, 48, 49, 50
    a.I(f"""
    v_lshlrev_b32 v{vLin}, 4, v{L}
    v_lshrrev_b32 v{t0}, 3, v{L}           ; r8
    v_and_b32 v{t1}, 7, v{L}
    v_and_b32 v{t2}, 2, v{t0}
    v_xor_b32 v{t1}, v{t1}, v{t2}
    v_mul_u32_u24 v{t0}, 3584, v{t0}
    v_lshl_add_u32 v{vdG}, v{t1}, 4, v{t0}
    v_xor_b32 v{vdU}, 64, v{vdG}
    s_lshl_b32 s{sFT}, s{sI}, 2
    s_add_u32 s{sFT}, s{sFT}, s{sW}
    s_and_b32 s{sN}, s{sI}, 7
    s_lshl_b32 s{sL}, s{sW}, 13
    """)

    def slot_of(n):
        return (n + 4) % 5

    htok = {}

    def issue_h(n):
        a.I(f"""
        s_lshl_b32 s{sT}, s{sG}, 3
        s_add_u32 s{sT}, s{sT}, s{sN}
        s_lshl_b32 s{sHO}, s{sT}, 15
        s_add_u32 s{sHO}, s{sHO}, s{sL}
        s_add_u32 s{sHO}, s{sHO}, {H_OFF}
        s_add_u32 s{sN}, s{sN}, 1
        s_and_b32 s{sN}, s{sN}, 7
        """)
        for hb in range(2):
            a.I(f"s_add_u32 m0, s{sL}, {slot_of(n)*32768 + hb*4096}")
            if hb:
                a.I(f"s_add_u32 s{sHO}, s{sHO}, 4096")
            for j in range(4):
                tk = a.I(f"buffer_load_dwordx4 v{vLin}, {srd(sWS)}, s{sHO} offen offset:{j*1024} {LD} lds")
        htok[n] = tk

    a.I(f"""
    s_lshl_b32 s{sO}, s{sI}, 7
    s_mul_i32 s{sT}, s{sW}, {8*3584}
    s_add_u32 s{sO}, s{sO}, s{sT}
    s_lshl_b32 s{sRT}, s{sW}, 10
    """)
    for n in range(14):
        dma(a, vdG, sWG, f"s{sO}", (sRT, n * 4096))
        wt = dma(a, vdU, sWU, f"s{sO}", (sRT, 57344 + n * 4096))
        a.I(f"s_add_u32 s{sO}, s{sO}, {32*3584}")
    issue_h(0)
    a.I(f"""
    v_bfe_u32 v{t0}, v{L}, 2, 2           ; r4
    v_lshrrev_b32 v{t1}, 5, v{L}          ; g2
    v_lshl_add_u32 v{t2}, v{t1}, 3, v{t0}
    v_lshlrev_b32 v{t2}, 7, v{t2}
    v_and_b32 v{t0}, 2, v{t0}
    v_lshlrev_b32 v{t0}, 4, v{t0}         ; 32*bit1
    v_bfe_u32 v{t3}, v{L}, 4, 1           ; mat
    v_lshl_or_b32 v{t0}, v{t3}, 6, v{t0}
    v_mul_u32_u24 v{t3}, 57344, v{t3}
    v_add_u32 v{t2}, v{t2}, v{t3}
    v_and_b32 v{t3}, 1, v{L}
    v_lshlrev_b32 v{t1}, 4, v{t3}
    v_and_b32 v{t3}, 2, v{L}
    v_lshl_or_b32 v{t1}, v{t3}, 2, v{t1}
    s_lshl_b32 s{sT}, s{sW}, 5
    v_or_b32 v{t1}, s{sT}, v{t1}
    v_xor_b32 v{t1}, v{t1}, v{t0}
    v_add_u32 v{vA}, v{t1}, v{t2}
    v_mov_b32 v{vBs[0]}, v{vLin}
    v_add_u32 v{vBs[1]}, 65536, v{vLin}
    v_add_u32 v{vBs[2]}, 131072, v{vLin}
    v_lshlrev_b32 v{vSt}, 3, v{L}
    """)
    for k in range(4):
        a.I(f"v_mov_b32 v{ones+k}, 0x3f803f80")
    WF = V.alloc(112)
    a.wait_tok(wt)
    a.I("s_barrier")
    for ks in range(28):
        for j in range(2):
            a.I(f"ds_read_b64_tr_b16 {vr(WF+4*ks+2*j,2)}, v{vA} offset:{(16*ks+4*j)*128}")
    a.waitcnt(lgkm=0)
    a.I("s_barrier")
    for n in range(1, 4):
        issue_h(n)
    CS = V.alloc(16)
    for ks in range(28):
        mf32(a, CS, vr(WF + 4 * ks, 4), vr(ones, 4), "0" if ks == 0 else vr(CS, 16))
    ACC = [V.alloc(16) for _ in range(2)]
    NB = 6
    BF = [V.alloc(4) for _ in range(NB)]
    SS = V.alloc(14, 2)
    st = V.alloc(2)
    tp = V.alloc(2)
    nm, r2 = V.alloc(), V.alloc()
    HP = V.alloc(4)
    sRTo = 51
    a.I(f"s_and_b32 s{sRTo}, s{sI}, 7")

    def stats_code(n):
        sl = slot_of(n)
        out = []
        out.append(f"v_add_u32 v{t0}, {sl*32768+28672}, v{vSt}")
        for j in range(7):
            out.append(f"ds_read_b64 {vr(SS+2*j,2)}, v{t0} offset:{j*512}")
        out.append(f"v_add_f32 v{st}, v{SS}, v{SS+2}")
        out.append(f"v_add_f32 v{st+1}, v{SS+1}, v{SS+3}")
        for j in range(2, 7):
            out.append(f"v_add_f32 v{st}, v{st}, v{SS+2*j}")
            out.append(f"v_add_f32 v{st+1}, v{st+1}, v{SS+2*j+1}")
        out += [f"v_mov_b32 v{tp}, v{st}", f"v_mov_b32 v{tp+1}, v{st+1}",
                f"v_permlane32_swap_b32 v{st}, v{tp}", f"v_permlane32_swap_b32 v{st+1}, v{tp+1}",
                f"v_add_f32 v{st}, v{st}, v{tp}", f"v_add_f32 v{st+1}, v{st+1}, v{tp+1}",
                f"v_mul_f32 v{nm}, {f32(-1.0/448)}, v{st}",
                f"v_mul_f32 v{st+1}, {f32(1.0/448)}, v{st+1}",
                f"v_fma_f32 v{st+1}, -v{nm}, v{nm}, v{st+1}",
                f"v_max_f32 v{st+1}, 0, v{st+1}",
                f"v_add_f32 v{st+1}, {f32(1e-5)}, v{st+1}",
                f"v_rcp_f32 v{r2}, v{st+1}"]
        return out

    def epi_code(n):
        acc = ACC[n % 2]
        out = []
        for k in range(16):
            out.append(f"v_fma_f32 v{acc+k}, v{CS+k}, v{nm}, v{acc+k}")
        for k in range(8):
            out.append(f"v_max_f32 v{acc+k}, 0, v{acc+k}")
            out.append(f"v_mul_f32 v{acc+8+k}, v{acc+8+k}, v{r2}")
        for k in range(8):
            out.append(f"v_mul_f32 v{acc+k}, v{acc+k}, v{acc+8+k}")
        for k in range(4):
            out.append(f"v_cvt_pk_bf16_f32 v{HP+k}, v{acc+2*k}, v{acc+2*k+1}")
        out += [f"s_lshl_b32 s{sT}, s{sG}, 3", f"s_add_u32 s{sT}, s{sT}, s{sRTo}", f"s_mul_i32 s{sT}, s{sT}, 112",
                f"s_add_u32 s{sT}, s{sT}, s{sFT}", f"s_lshl_b32 s{sT}, s{sT}, 10", f"s_add_u32 s{sO}, s{sT}, {HID_OFF}",
                f"s_add_u32 s{sRTo}, s{sRTo}, 1", f"s_and_b32 s{sRTo}, s{sRTo}, 7",
                f"buffer_store_dwordx4 {vr(HP,4)}, v{vLin}, {srd(sWS)}, s{sO} offen {ST}"]
        return out

    for n in range(8):
        sl = slot_of(n)
        a.wait_tok(htok[n], lgkm=0)
        a.I("s_barrier")

        def rd(ks):
            off = sl * 32768 + ks * 1024
            a.I(f"ds_read_b128 {vr(BF[ks % NB],4)}, v{vBs[off >> 16]} offset:{off & 65535}")
        for ks in range(4):
            rd(ks)
        if n >= 1 and n + 3 < 8:
            issue_h(n + 3)
        fill = (epi_code(n - 1) if n else []) + stats_code(n)
        acc = ACC[n % 2]
        for ks in range(28):
            mf32(a, acc, vr(WF + 4 * ks, 4), vr(BF[ks % NB], 4), "0" if ks == 0 else vr(acc, 16))
            if ks + 4 < 28:
                rd(ks + 4)
            if ks >= 1:
                for _ in range(4):
                    if fill:
                        a.I(fill.pop(0))
        while fill:
            a.I(fill.pop(0))
    for s in epi_code(7):
        a.I(s)
    return V.max


def phase4(a, LD=""):
    V = RegAlloc("v", 2, 256)
    L = vLane
    t0, t1, t2, t3 = [V.alloc() for _ in range(4)]
    vdW, vLin, vO = [V.alloc() for _ in range(3)]
    vA = [V.alloc() for _ in range(2)]
    sT, sO, sL, sMT, sNT, sRT0, sRT1, sB0, sB1, sN2 = 44, 45, 46, 47, 48, 49, 50, 51, 52, 53
    a.I(f"""
    s_mul_i32 s{sMT}, s{sI}, 37
    s_lshr_b32 s{sMT}, s{sMT}, 8           ; i/7
    s_mul_i32 s{sT}, s{sMT}, 7
    s_sub_u32 s{sNT}, s{sI}, s{sT}
    s_lshl_b32 s{sRT0}, s{sG}, 3
    s_lshl_b32 s{sT}, s{sMT}, 1
    s_add_u32 s{sRT0}, s{sRT0}, s{sT}
    s_lshr_b32 s{sT}, s{sW}, 1
    s_add_u32 s{sRT0}, s{sRT0}, s{sT}
    s_xor_b32 s{sRT1}, s{sRT0}, 1
    s_and_b32 s{sN2}, s{sW}, 1
    v_lshlrev_b32 v{vLin}, 4, v{L}
    v_lshrrev_b32 v{t0}, 3, v{L}           ; r8
    v_and_b32 v{t1}, 7, v{L}
    v_and_b32 v{t2}, 2, v{t0}
    v_lshlrev_b32 v{t2}, 1, v{t2}          ; 4*bit1(r8)
    v_xor_b32 v{t1}, v{t1}, v{t2}
    v_mul_u32_u24 v{t0}, 896, v{t0}
    v_lshl_add_u32 v{vdW}, v{t1}, 4, v{t0}
    s_mul_i32 s{sO}, s{sW}, {448*896}
    s_lshl_b32 s{sT}, s{sNT}, 7
    s_add_u32 s{sO}, s{sO}, s{sT}
    s_mul_i32 s{sL}, s{sW}, 40960
    s_mul_i32 s{sT}, s{sW}, 28
    s_mul_i32 s{sB0}, s{sRT0}, 112
    s_add_u32 s{sB0}, s{sB0}, s{sT}
    s_lshl_b32 s{sB0}, s{sB0}, 10
    s_add_u32 s{sB0}, s{sB0}, {HID_OFF}
    s_mul_i32 s{sB1}, s{sRT1}, 112
    s_add_u32 s{sB1}, s{sB1}, s{sT}
    s_lshl_b32 s{sB1}, s{sB1}, 10
    s_add_u32 s{sB1}, s{sB1}, {HID_OFF}
    """)
    HR = V.alloc(8)
    ACC = {(m, n): V.alloc(16) for m in range(2) for n in range(2)}
    a.I(f"""
    s_lshl_b32 s{sT}, s{sNT}, 1
    s_add_u32 s{sT}, s{sT}, s{sN2}
    s_lshl_b32 s{sT}, s{sT}, 11
    s_lshl_b32 s54, s{sRT0}, 15
    s_add_u32 s54, s54, s{sT}
    s_add_u32 s54, s54, {H_OFF}
    buffer_load_dwordx4 {vr(HR,4)}, v{vLin}, {srd(sWS)}, s54 offen {LD}
    buffer_load_dwordx4 {vr(HR+4,4)}, v{vLin}, {srd(sWS)}, s54 offen offset:1024 {LD}
    """)
    NBK = 20
    BF = [[V.alloc(4) for m in range(2)] for _ in range(NBK)]
    RW = 20
    wtok = {}

    def issue(ks):
        for j in range(2):
            wtok[ks] = dma(a, vdW, sWD, f"s{sO}", (sL, (ks % RW) * 2048 + j * 1024))
            a.I(f"s_add_u32 s{sO}, s{sO}, {8*896}")
        a.I(f"buffer_load_dwordx4 {vr(BF[ks % NBK][0],4)}, v{vLin}, {srd(sWS)}, s{sB0} offen offset:{(ks%4)*1024} {LD}")
        a.I(f"buffer_load_dwordx4 {vr(BF[ks % NBK][1],4)}, v{vLin}, {srd(sWS)}, s{sB1} offen offset:{(ks%4)*1024} {LD}")
        if ks % 4 == 3:
            a.I(f"s_add_u32 s{sB0}, s{sB0}, 4096\ns_add_u32 s{sB1}, s{sB1}, 4096")
    PRE = 15
    for ks in range(PRE):
        issue(ks)
    a.I(f"""
    v_bfe_u32 v{t0}, v{L}, 2, 2           ; r4
    v_lshrrev_b32 v{t1}, 5, v{L}          ; g2
    v_lshl_add_u32 v{t2}, v{t1}, 3, v{t0}
    v_lshlrev_b32 v{t2}, 7, v{t2}
    v_and_b32 v{t0}, 2, v{t0}
    v_lshlrev_b32 v{t0}, 5, v{t0}         ; 64*bit1
    v_and_b32 v{t1}, 16, v{L}
    v_lshlrev_b32 v{t1}, 1, v{t1}         ; 32*(G&1)
    v_and_b32 v{t3}, 1, v{L}
    v_lshl_or_b32 v{t1}, v{t3}, 4, v{t1}
    v_and_b32 v{t3}, 2, v{L}
    v_lshl_or_b32 v{t1}, v{t3}, 2, v{t1}
    s_lshl_b32 s{sT}, s{sN2}, 6
    v_or_b32 v{t1}, s{sT}, v{t1}
    v_xor_b32 v{t1}, v{t1}, v{t0}
    v_add3_u32 v{vA[0]}, v{t1}, v{t2}, s{sL}
    v_xor_b32 v{vA[1]}, 64, v{vA[0]}
    v_and_b32 v{t0}, 31, v{L}
    v_lshrrev_b32 v{t1}, 5, v{L}
    v_mul_u32_u24 v{vO}, 896, v{t0}
    v_lshl_add_u32 v{vO}, v{t1}, 4, v{vO}
    """)
    unpack8(a, ACC[(0, 0)], HR)
    unpack8(a, ACC[(0, 0)] + 8, HR + 4)

    def rdA(ks):
        a.wait_tok(wtok[ks])
        for n in range(2):
            for j in range(2):
                a.I(f"ds_read_b64_tr_b16 {ar(8*ks+4*n+2*j,2)}, v{vA[n]} offset:{(ks % RW)*2048 + j*512}")
    rdA(0)
    for ks in range(28):
        if ks + 1 < 28:
            rdA(ks + 1)
        for m in range(2):
            for n in range(2):
                acc = ACC[(m, n)]
                c = "0" if (ks == 0 and (m, n) != (0, 0)) else vr(acc, 16)
                mf32(a, acc, ar(8 * ks + 4 * n, 4), vr(BF[ks % NBK][m], 4), c)
        if ks + PRE < 28:
            issue(ks + PRE)
    a.waitcnt(lgkm=0)
    a.I("s_barrier")
    for u in (1, 2, 3):
        acc = ACC[(u >> 1, u & 1)]
        a.I(f"s_xor_b32 s{sT}, s{sW}, {u}\ns_mul_i32 s{sT}, s{sT}, 12288\nv_add_u32 v{t0}, s{sT}, v{vLin}")
        for k in range(4):
            a.I(f"ds_write_b128 v{t0}, {vr(acc+4*k,4)} offset:{(u-1)*4096 + k*1024}")
    a.I(f"s_mul_i32 s{sT}, s{sW}, 12288\nv_add_u32 v{t0}, s{sT}, v{vLin}")
    a.waitcnt(lgkm=0)
    a.I("s_barrier")
    for u in (1, 2, 3):
        acc = ACC[(u >> 1, u & 1)]
        for k in range(4):
            a.I(f"ds_read_b128 {vr(acc+4*k,4)}, v{t0} offset:{(u-1)*4096 + k*1024}")
    o = ACC[(0, 0)]
    for u in (1, 2, 3):
        acc = ACC[(u >> 1, u & 1)]
        for k in range(8):
            a.I(f"v_pk_add_f32 {vr(o+2*k,2)}, {vr(o+2*k,2)}, {vr(acc+2*k,2)}")
    for k in range(8):
        a.I(f"v_cvt_pk_bf16_f32 v{HR+k}, v{o+2*k}, v{o+2*k+1}")
    a.I(f"""
    s_mul_i32 s{sO}, s{sRT0}, {32*896}
    s_lshl_b32 s{sT}, s{sNT}, 7
    s_add_u32 s{sO}, s{sO}, s{sT}
    s_lshl_b32 s{sT}, s{sN2}, 6
    s_add_u32 s{sO}, s{sO}, s{sT}
    buffer_store_dwordx4 {vr(HR,4)}, v{vO}, {srd(sOUT)}, s{sO} offen
    buffer_store_dwordx4 {vr(HR+4,4)}, v{vO}, {srd(sOUT)}, s{sO} offen offset:32
    """)
    return V.max


def desc(name):
    return f""".amdhsa_kernel {name}
  .amdhsa_next_free_vgpr 512
  .amdhsa_next_free_sgpr 102
  .amdhsa_accum_offset 256
  .amdhsa_group_segment_fixed_size 0
  .amdhsa_kernarg_size 80
  .amdhsa_user_sgpr_count 2
  .amdhsa_user_sgpr_kernarg_segment_ptr 1
  .amdhsa_system_sgpr_workgroup_id_x 1
.end_amdhsa_kernel"""


def main(out, extra_empty=0):
    a = Asm()
    ks = [("p1_kernel", ["x", "wq", "ws"], 32, phase1), ("p2_kernel", ["x", "wo", "ws"], 32, phase2),
          ("p3_kernel", ["wg", "wu", "ws"], 28, phase3), ("p4_kernel", ["wd", "out", "ws"], 28, phase4)]
    for name, bufs, n, fn in ks:
        a.raw(f"; @launch kernel={name} grid=({n*8},1,1) block=(256,1,1) lds={LDS}")
    for e in range(extra_empty):
        a.raw(f"; @launch kernel=empty_kernel grid=(256,1,1) block=(256,1,1) lds=0")
    a.raw('.amdgcn_target "amdgcn-amd-amdhsa--gfx950"\n.text')
    for name, bufs, n, fn in ks:
        prologue(a, name, bufs, n)
        mx = fn(a)
        epilogue(a, name)
        print(name, "max vgpr", mx, file=sys.stderr)
    if extra_empty:
        a.raw(".globl empty_kernel\n.p2align 8\n.type empty_kernel,@function\nempty_kernel:\ns_endpgm")
    a.raw('.section .rodata,"a"')
    for name, *_ in ks:
        a.raw(".p2align 6\n" + desc(name))
    if extra_empty:
        a.raw(".p2align 6\n" + desc("empty_kernel"))
    bad = a.verify()
    assert not bad, bad
    open(out, "w").write(a.text())


if __name__ == "__main__":
    main(sys.argv[1], int(sys.argv[2]) if len(sys.argv) > 2 else 0)
```

```python
import sys, math, struct
from asmgen import *

NAME = "sequential_preLN__sliding_local_dilated__glu_gated_reglu__prompt"
O_OFF, H_OFF, HID_OFF = 0, 2 << 20, 4 << 20
WS_BYTES = 16 << 20
LDS = 163840

sX, sWQ, sWO, sWG, sWU, sWD, sOUT, sWS = 8, 12, 16, 20, 24, 28, 32, 36
SRD = {"x": (sX, 0, 1835008), "wq": (sWQ, 8, 1204224), "wo": (sWO, 16, 401408), "wg": (sWG, 32, 1605632),
       "wu": (sWU, 40, 1605632), "wd": (sWD, 48, 1605632), "out": (sOUT, 56, 1835008), "ws": (sWS, 72, WS_BYTES)}
sW, sG, sI = 40, 41, 42
vLane = 1


def f32(x):
    return "0x%08x" % struct.unpack("<I", struct.pack("<f", x))[0]


def srd(n):
    return sr(n, 4)


def prologue(a, name, bufs, nwg_i):
    a.raw(".globl %s\n.p2align 8\n.type %s,@function" % (name, name))
    a.raw(".kernel_start")
    a.reset_state()
    a.raw(name + ":")
    for b in bufs:
        r, off, n = SRD[b]
        a.I("s_load_dwordx2 %s, s[0:1], %d" % (sr(r, 2), off))
    a.I("s_cmp_ge_u32 s2, %d" % (nwg_i * 8))
    a.I("s_cbranch_scc1 %s_end" % name)
    stamp(a)
    a.I("v_lshrrev_b32 v2, 6, v0")
    a.I("v_and_b32 v%d, 63, v0" % vLane)
    a.I("v_readfirstlane_b32 s%d, v2" % sW)
    a.I("s_and_b32 s%d, s2, 7" % sG)
    a.I("s_lshr_b32 s%d, s2, 3" % sI)
    for b in bufs:
        r, off, n = SRD[b]
        a.I("s_mov_b32 s%d, %d" % (r + 2, n))
        a.I("s_mov_b32 s%d, 0x20000" % (r + 3))


STAMPS = False
STAMP_OFF = 12 << 20
_st = [0]


def stamp(a):
    if STAMPS:
        a.I("s_memtime %s" % sr(76 + 2 * _st[0], 2))
        _st[0] += 1
        assert _st[0] <= 12


def epilogue(a, name):
    if STAMPS:
        a.waitcnt(vm=0)
        stamp(a)
        a.waitcnt(lgkm=0)
        kid = int(name[1]) - 1
        a.I(f"s_lshl_b32 s3, s2, 2\ns_add_u32 s3, s3, s{sW}\ns_lshl_b32 s3, s3, 6\ns_add_u32 s3, s3, {STAMP_OFF + kid * 65536}")
        a.I("s_mov_b64 exec, 1\nv_mov_b32 v2, 0")
        for k in range(_st[0]):
            a.I(f"s_sub_u32 s4, s{76+2*k}, s76\nv_mov_b32 v{3+k}, s4\nbuffer_store_dword v{3+k}, v2, {srd(sWS)}, s3 offen offset:{4*k}")
        _st[0] = 0
    a.I("%s_end:" % name)
    a.I("s_endpgm")


def dma(a, voff, srdn, soff, m0expr, flags="", maybe=False):
    a.I("s_add_u32 m0, s%d, %d" % m0expr)
    return a.I("buffer_load_dwordx4 v%d, %s, %s offen %s lds" % (voff, srd(srdn), soff, flags), maybe=maybe)


def phase1(a, ST=""):
    V = RegAlloc("v", 2, 256)
    SLOT = 34816
    SCR = 4 * SLOT
    t0, t1, t2, t3 = [V.alloc() for _ in range(4)]
    vdW = [[V.alloc() for e in range(2)] for m in range(3)]
    vdX = [V.alloc() for j in range(3)]
    vXA = [[V.alloc() for ks in range(2)] for hi in range(2)]
    vWA = [[V.alloc() for ft in range(2)] for hi in range(2)]
    ones = V.alloc(4)
    sMT, sHP, sR0, sHS, sA, sKB, sOX, sOW, sLX, sLW, sT = 44, 45, 46, 47, 48, 49, 50, 51, 52, 53, 54
    L = vLane
    a.I(f"""
    s_lshr_b32 s{sMT}, s{sI}, 3
    s_and_b32 s{sHP}, s{sI}, 7
    s_lshl_b32 s{sR0}, s{sG}, 8
    s_lshl_b32 s{sT}, s{sMT}, 6
    s_add_u32 s{sR0}, s{sR0}, s{sT}
    s_and_b32 s{sHS}, s{sW}, 1
    s_lshr_b32 s{sA}, s{sW}, 1
    s_cmp_eq_u32 s{sG}, 7
    s_cselect_b32 s{sKB}, 0, s{sG}
    s_lshl_b32 s{sOX}, s{sKB}, 7
    s_mul_i32 s{sOW}, s{sKB}, 172032
    s_mul_i32 s{sT}, s{sHP}, 112
    s_add_u32 s{sOW}, s{sOW}, s{sT}
    s_lshl_b32 s{sLX}, s{sW}, 10
    s_lshl_b32 s{sLW}, s{sW}, 11
    v_lshrrev_b32 v{t0}, 3, v{L}          ; r8
    v_and_b32 v{t1}, 7, v{L}              ; p8
    v_and_b32 v{t2}, 2, v{t0}             ; 2*bit1(r8)
    v_xor_b32 v{t2}, v{t2}, v{t1}
    v_lshlrev_b32 v{t2}, 4, v{t2}
    s_lshl_b32 s{sT}, s{sW}, 4
    v_add_u32 v{t3}, s{sT}, v{t0}         ; 16w + r8
    v_mul_u32_u24 v{t3}, 2688, v{t3}
    v_add_u32 v{vdW[0][0]}, v{t3}, v{t2}
    v_xor_b32 v{t2}, 64, v{t2}
    v_add3_u32 v{vdW[0][1]}, v{t3}, v{t2}, 0
    v_add_u32 v{vdW[0][1]}, {8*2688}, v{vdW[0][1]}
    v_add_u32 v{vdW[1][0]}, 896, v{vdW[0][0]}
    v_add_u32 v{vdW[1][1]}, 896, v{vdW[0][1]}
    v_add_u32 v{vdW[2][0]}, 1792, v{vdW[0][0]}
    v_add_u32 v{vdW[2][1]}, 1792, v{vdW[0][1]}
    v_lshrrev_b32 v{t2}, 1, v{t0}
    s_lshl_b32 s{sT}, s{sHS}, 2
    v_or_b32 v{t2}, s{sT}, v{t2}          ; f
    v_xor_b32 v{t2}, v{t2}, v{t1}
    v_lshlrev_b32 v{t2}, 4, v{t2}
    s_lshl_b32 s{sT}, s{sW}, 3
    s_add_u32 s{sT}, s{sT}, s{sR0}
    s_sub_u32 s{sT}, s{sT}, 16
    v_add_u32 v{t3}, s{sT}, v{t0}
    """)
    for j in range(3):
        a.I(f"""
        v_add_u32 v{vdX[j]}, {32*j}, v{t3}
        v_max_i32 v{vdX[j]}, 0, v{vdX[j]}
        v_mul_u32_u24 v{vdX[j]}, 896, v{vdX[j]}
        v_add_u32 v{vdX[j]}, v{vdX[j]}, v{t2}
        """)

    toks = {}

    def issue(it):
        base = (it % 4) * SLOT
        for j in range(2):
            dma(a, vdX[j], sX, f"s{sOX}", (sLX, base + j * 4096))
        lab = a.newlabel("P1skip")
        a.I(f"s_cmp_ge_u32 s{sW}, 2\ns_cbranch_scc1 {lab}")
        dma(a, vdX[2], sX, f"s{sOX}", (sLX, base + 8192), maybe=True)
        a.I(lab + ":")
        for e in range(2):
            for m in range(3):
                tk = dma(a, vdW[m][e], sWQ, f"s{sOW}", (sLW, base + 10240 + m * 8192 + e * 1024))
        toks[it] = tk
        a.I(f"""
        s_add_u32 s{sKB}, s{sKB}, 1
        s_add_u32 s{sOX}, s{sOX}, 128
        s_add_u32 s{sOW}, s{sOW}, 172032
        s_cmp_eq_u32 s{sKB}, 7
        s_cselect_b32 s{sT}, {7*128}, 0
        s_sub_u32 s{sOX}, s{sOX}, s{sT}
        s_cmp_eq_u32 s{sKB}, 7
        s_cselect_b32 s{sT}, {7*172032}, 0
        s_sub_u32 s{sOW}, s{sOW}, s{sT}
        """)

    for it in range(4):
        issue(it)

    stamp(a)
    a.I(f"""
    v_and_b32 v{t0}, 15, v{L}             ; row16
    v_lshrrev_b32 v{t1}, 4, v{L}          ; G
    v_lshrrev_b32 v{t2}, 1, v{t0}
    v_xor_b32 v{t2}, v{t2}, v{t1}
    v_lshlrev_b32 v{t2}, 4, v{t2}
    v_lshl_add_u32 v{t2}, v{t0}, 7, v{t2}
    s_lshl_b32 s{sT}, s{sA}, 12
    v_add_u32 v{vXA[0][0]}, s{sT}, v{t2}
    v_xor_b32 v{vXA[0][1]}, 64, v{vXA[0][0]}
    v_add_u32 v{vXA[1][0]}, {2*SLOT}, v{vXA[0][0]}
    v_add_u32 v{vXA[1][1]}, {2*SLOT}, v{vXA[0][1]}
    ; W read
    v_and_b32 v{t0}, 3, v{L}              ; c4
    v_lshlrev_b32 v{t0}, 3, v{t0}
    s_mul_i32 s{sT}, s{sHS}, 56
    v_add_u32 v{t0}, s{sT}, v{t0}         ; b (ft=0)
    v_bfe_u32 v{t2}, v{L}, 2, 2           ; r4
    v_and_b32 v{t3}, 2, v{t2}
    v_lshlrev_b32 v{t2}, 7, v{t2}
    v_lshl_add_u32 v{t2}, v{t1}, 10, v{t2}  ; G*1024 + r4*128
    v_and_b32 v{t1}, 1, v{t1}
    v_lshl_or_b32 v{t3}, v{t1}, 2, v{t3}  ; 2*bit1(r4) + 4*(G&1)
    v_lshlrev_b32 v{t3}, 4, v{t3}         ; *16
    v_xor_b32 v{t1}, v{t0}, v{t3}
    v_add3_u32 v{vWA[0][0]}, v{t1}, v{t2}, 0
    v_add_u32 v{t0}, 32, v{t0}
    v_xor_b32 v{t1}, v{t0}, v{t3}
    v_add3_u32 v{vWA[0][1]}, v{t1}, v{t2}, 0
    v_add_u32 v{vWA[0][0]}, 10240, v{vWA[0][0]}
    v_add_u32 v{vWA[0][1]}, 10240, v{vWA[0][1]}
    v_add_u32 v{vWA[1][0]}, {2*SLOT}, v{vWA[0][0]}
    v_add_u32 v{vWA[1][1]}, {2*SLOT}, v{vWA[0][1]}
    """)
    for k in range(4):
        a.I(f"v_mov_b32 v{ones+k}, 0x3f803f80")

    Q = {(t, ft): V.alloc(4) for t in (1, 2) for ft in range(2)}
    K = {(t, ft): V.alloc(4) for t in range(3) for ft in range(2)}
    Vv = {(t, ft): V.alloc(4) for t in range(3) for ft in range(2)}
    CS = {(m, ft): V.alloc(4) for m in range(3) for ft in range(2)}
    S1 = [V.alloc(4) for t in range(3)]
    GR = [V.alloc(4) for t in range(3)]
    mk = V.mark()
    XF = [[V.alloc(4) for t in range(3)] for s in range(2)]
    WF = [{(m, ft): V.alloc(4) for m in range(3) for ft in range(2)} for s in range(2)]

    def mf(d, A, B, first):
        a.I("v_mfma_f32_16x16x32_bf16 %s, %s, %s, %s" % (vr(d, 4), vr(A, 4), vr(B, 4), "0" if first else vr(d, 4)))

    def reads(it, ks):
        hi = (it % 4) // 2
        base = (it % 2) * SLOT
        out = []
        for t in range(3):
            out.append(f"ds_read_b128 {vr(XF[ks][t],4)}, v{vXA[hi][ks]} offset:{base + t*2048}")
        for m in (1, 2, 0):
            for ft in range(2):
                for half in range(2):
                    out.append(f"ds_read_b64_tr_b16 {vr(WF[ks][(m,ft)]+2*half,2)}, v{vWA[hi][ft]} offset:{base + m*8192 + ks*4096 + half*512}")
        return out

    def mfmas(ks, first):
        X, W = XF[ks], WF[ks]
        out = []
        for t in range(3):
            out.append((S1[t], ones, X[t]))
            out.append((GR[t], X[t], X[t]))
        for ft in range(2):
            for t in range(3):
                out.append((K[(t, ft)], W[(1, ft)], X[t]))
            out.append((CS[(1, ft)], W[(1, ft)], ones))
        for ft in range(2):
            for t in range(3):
                out.append((Vv[(t, ft)], X[t], W[(2, ft)]))
            out.append((CS[(2, ft)], ones, W[(2, ft)]))
        for ft in range(2):
            for t in (1, 2):
                out.append((Q[(t, ft)], W[(0, ft)], X[t]))
            out.append((CS[(0, ft)], W[(0, ft)], ones))
        return out

    for it in range(7):
        a.wait_tok(toks[it], lgkm=0)
        a.I("s_barrier")
        stamp(a)
        r0 = reads(it, 0)
        for r in r0:
            a.I(r)
        if 1 <= it <= 3:
            issue(it + 3)
        r1 = reads(it, 1)
        m0 = mfmas(0, it == 0)
        for n, (d, A, B) in enumerate(m0):
            mf(d, A, B, it == 0)
            if n >= 6 and r1:
                a.I(r1.pop(0))
        for (d, A, B) in mfmas(1, False):
            mf(d, A, B, False)

    stamp(a)
    V.release(mk)
    sPar, sB1, sCur0, sCur1, sDiag, sBias = 64, 66, 68, 70, 72, 74
    q, G, c0 = t0, t1, t2
    mP = [V.alloc() for _ in range(2)]
    mC = [V.alloc() for _ in range(2)]
    pad = V.alloc()
    vSW, vSL, vSR = V.alloc(), V.alloc(), V.alloc()
    a.I(f"""
    v_and_b32 v{q}, 15, v{L}
    v_lshrrev_b32 v{G}, 4, v{L}
    v_and_b32 v{t3}, 1, v{q}
    v_cmp_eq_u32 {sr(sPar,2)}, 1, v{t3}
    v_lshl_add_u32 v{c0}, v{G}, 2, v{t3}
    v_cmp_le_u32 {sr(sCur0,2)}, v{c0}, v{q}
    v_add_u32 v{c0}, 2, v{c0}
    v_cmp_le_u32 {sr(sCur1,2)}, v{c0}, v{q}
    v_and_b32 v{t3}, 2, v{q}
    v_cmp_eq_u32 {sr(sB1,2)}, 2, v{t3}
    v_lshrrev_b32 v{t3}, 2, v{q}
    v_cmp_eq_u32 {sr(sDiag,2)}, v{t3}, v{G}
    v_mov_b32 v{t3}, 0xffff
    v_mov_b32 v{c0}, 0xffff0000
    v_cndmask_b32 v{t3}, v{t3}, v{c0}, {sr(sPar,2)}
    v_cndmask_b32 v{mP[0]}, v{t3}, 0, {sr(sCur0,2)}
    v_cndmask_b32 v{mP[1]}, v{t3}, 0, {sr(sCur1,2)}
    v_cndmask_b32 v{mC[0]}, 0, v{t3}, {sr(sCur0,2)}
    v_cndmask_b32 v{mC[1]}, 0, v{t3}, {sr(sCur1,2)}
    v_cmp_ne_u32 vcc, 3, v{G}
    s_lshl_b32 s{sT}, s{sW}, 9
    s_add_u32 s{sT}, s{sT}, {SCR}
    v_cndmask_b32 v{pad}, 0, -1, vcc
    v_lshl_add_u32 v{vSL}, v{q}, 2, s{sT}
    v_lshl_add_u32 v{vSR}, v{G}, 4, s{sT}
    s_or_b32 s{sT}, s{sR0}, s{sA}
    s_cmp_eq_u32 s{sT}, 0
    s_cselect_b32 s{sBias}, {f32(-1e30)}, 0
    """)
    nm = [V.alloc() for t in range(3)]
    rs = [V.alloc() for t in range(3)]
    for t in range(3):
        g = GR[t]
        a.I(f"""
        v_cndmask_b32 v{g}, v{g}, v{g+1}, {sr(sPar,2)}
        v_cndmask_b32 v{g+2}, v{g+2}, v{g+3}, {sr(sPar,2)}
        v_mul_f32 v{nm[t]}, {f32(-1.0/448)}, v{S1[t]}
        v_cndmask_b32 v{g}, v{g}, v{g+2}, {sr(sB1,2)}
        v_mul_f32 v{g+1}, v{nm[t]}, v{nm[t]}
        v_mul_f32 v{g}, {f32(1.0/448)}, v{g}
        v_sub_f32 v{g}, v{g}, v{g+1}
        v_max_f32 v{g}, 0, v{g}
        v_add_f32 v{g}, {f32(1e-5)}, v{g}
        v_rsq_f32 v{rs[t]}, v{g}
        """)
    a.I(f"s_mov_b64 exec, {sr(sDiag,2)}")
    for t in range(3):
        a.I(f"ds_write2_b32 v{vSL}, v{nm[t]}, v{rs[t]} offset0:{t*32} offset1:{t*32+16}")
    a.I("s_mov_b64 exec, -1")
    a.waitcnt(lgkm=0)
    PL = [V.alloc(2) for t in range(3)]
    NMR = [V.alloc(4) for t in range(3)]
    RSR = [V.alloc(4) for t in range(3)]
    for t in range(3):
        a.I(f"ds_read2_b32 {vr(PL[t],2)}, v{vSL} offset0:{t*32} offset1:{t*32+16}")
    for t in range(3):
        a.I(f"ds_read_b128 {vr(NMR[t],4)}, v{vSR} offset:{t*128}")
        a.I(f"ds_read_b128 {vr(RSR[t],4)}, v{vSR} offset:{t*128+64}")
    KP = [V.alloc(4) for t in range(3)]
    QP = {t: V.alloc(4) for t in (1, 2)}
    VP = [V.alloc(6, 2) for ft in range(2)]
    QS = {t: V.alloc(2) for t in (1, 2)}

    def norm_lane(acc, cs, pl, mul):
        for k in (0, 2):
            a.I(f"v_pk_fma_f32 {vr(acc+k,2)}, {vr(cs+k,2)}, {vr(pl,2)}, {vr(acc+k,2)} op_sel_hi:[1,0,1]")
        for k in (0, 2):
            a.I(f"v_pk_mul_f32 {vr(acc+k,2)}, {vr(acc+k,2)}, {vr(mul,2)} op_sel:[0,1] op_sel_hi:[1,1]")

    cexp = (28 ** -0.5) * math.log2(math.e)
    for t in range(3):
        for ft in range(2):
            acc = K[(t, ft)]
            norm_lane(acc, CS[(1, ft)], PL[t], PL[t])
            a.I(f"v_cvt_pk_bf16_f32 v{KP[t]+2*ft}, v{acc}, v{acc+1}")
            a.I(f"v_cvt_pk_bf16_f32 v{KP[t]+2*ft+1}, v{acc+2}, v{acc+3}")
    for t in (1, 2):
        a.I(f"v_mul_f32 v{QS[t]+1}, {f32(cexp)}, v{PL[t]+1}")
        for ft in range(2):
            acc = Q[(t, ft)]
            norm_lane(acc, CS[(0, ft)], PL[t], QS[t])
            a.I(f"v_cvt_pk_bf16_f32 v{QP[t]+2*ft}, v{acc}, v{acc+1}")
            a.I(f"v_cvt_pk_bf16_f32 v{QP[t]+2*ft+1}, v{acc+2}, v{acc+3}")
        a.I(f"v_and_b32 v{QP[t]+2}, v{QP[t]+2}, v{pad}")
        a.I(f"v_and_b32 v{QP[t]+3}, v{QP[t]+3}, v{pad}")
    SP = {t: V.alloc(4) for t in (1, 2)}
    SC = {t: V.alloc(4) for t in (1, 2)}
    for t in (1, 2):
        mf(SP[t], KP[t - 1], QP[t], True)
        mf(SC[t], KP[t], QP[t], True)
    for ft in range(2):
        for t in range(3):
            acc = Vv[(t, ft)]
            for k in (0, 2):
                a.I(f"v_pk_fma_f32 {vr(acc+k,2)}, {vr(NMR[t]+k,2)}, {vr(CS[(2,ft)],2)}, {vr(acc+k,2)}")
            for k in (0, 2):
                a.I(f"v_pk_mul_f32 {vr(acc+k,2)}, {vr(acc+k,2)}, {vr(RSR[t]+k,2)}")
            a.I(f"v_cvt_pk_bf16_f32 v{VP[ft]+2*t}, v{acc}, v{acc+1}")
            a.I(f"v_cvt_pk_bf16_f32 v{VP[ft]+2*t+1}, v{acc+2}, v{acc+3}")
    T = (1, 2)
    mx = {t: V.alloc() for t in T}
    tm = {t: V.alloc() for t in T}

    def both(fmt):
        for t in T:
            a.I(fmt.format(p=SP[t], p1=SP[t] + 1, p2=SP[t] + 2, p3=SP[t] + 3, c=SC[t], c1=SC[t] + 1, c2=SC[t] + 2, c3=SC[t] + 3,
                           mx=mx[t], tm=tm[t]))

    P = sr(sPar, 2)
    both("v_cndmask_b32 v{p}, v{p}, v{p1}, " + P)
    both("v_cndmask_b32 v{p2}, v{p2}, v{p3}, " + P)
    both("v_cndmask_b32 v{c}, v{c}, v{c1}, " + P)
    both("v_cndmask_b32 v{c2}, v{c2}, v{c3}, " + P)
    a.I(f"v_add_f32 v{SP[1]}, s{sBias}, v{SP[1]}")
    a.I(f"v_add_f32 v{SP[1]+2}, s{sBias}, v{SP[1]+2}")
    both("v_cndmask_b32 v{p}, v{p}, v{c}, " + sr(sCur0, 2))
    both("v_cndmask_b32 v{p2}, v{p2}, v{c2}, " + sr(sCur1, 2))
    both("v_max_f32 v{mx}, v{p}, v{p2}")
    for sw in ("v_permlane32_swap_b32", "v_permlane16_swap_b32"):
        both("v_mov_b32 v{tm}, v{mx}")
        both(sw + " v{mx}, v{tm}")
        both("v_max_f32 v{mx}, v{mx}, v{tm}")
    both("v_sub_f32 v{p}, v{p}, v{mx}")
    both("v_sub_f32 v{p2}, v{p2}, v{mx}")
    both("v_exp_f32 v{p}, v{p}")
    both("v_exp_f32 v{p2}, v{p2}")
    both("v_add_f32 v{mx}, v{p}, v{p2}")
    for sw in ("v_permlane32_swap_b32", "v_permlane16_swap_b32"):
        both("v_mov_b32 v{tm}, v{mx}")
        both(sw + " v{mx}, v{tm}")
        both("v_add_f32 v{mx}, v{mx}, v{tm}")
    both("v_rcp_f32 v{mx}, v{mx}")
    both("v_mul_f32 v{p}, v{p}, v{mx}")
    both("v_mul_f32 v{p2}, v{p2}, v{mx}")
    both("v_cvt_pk_bf16_f32 v{p}, v{p}, v{p}")
    both("v_cvt_pk_bf16_f32 v{p2}, v{p2}, v{p2}")
    both("v_and_b32 v{c}, v{p}, v%d" % mP[0])
    both("v_and_b32 v{c1}, v{p2}, v%d" % mP[1])
    both("v_and_b32 v{c2}, v{p}, v%d" % mC[0])
    both("v_and_b32 v{c3}, v{p2}, v%d" % mC[1])
    OA = {(t, ft): V.alloc(4) for t in T for ft in range(2)}
    for t in T:
        for ft in range(2):
            mf(OA[(t, ft)], VP[ft] + 2 * (t - 1), SC[t], True)
    a.I(f"""
    v_lshlrev_b32 v{t0}, 4, v{L}
    s_lshr_b32 s{sT}, s{sR0}, 4
    s_lshl_b32 s{sOX}, s{sA}, 1
    s_add_u32 s{sT}, s{sT}, s{sOX}
    s_lshl_b32 s{sT}, s{sT}, 4
    s_lshl_b32 s{sOX}, s{sHP}, 1
    s_add_u32 s{sT}, s{sT}, s{sOX}
    s_add_u32 s{sT}, s{sT}, s{sHS}
    s_lshl_b32 s{sT}, s{sT}, 10
    s_add_u32 s{sOX}, s{sT}, {O_OFF}
    s_add_u32 s{sOW}, s{sT}, {O_OFF + 16384}
    """)
    stamp(a)
    for t in T:
        o = SP[t]
        for ft in range(2):
            acc = OA[(t, ft)]
            a.I(f"v_cvt_pk_bf16_f32 v{o+2*ft}, v{acc}, v{acc+1}")
            a.I(f"v_cvt_pk_bf16_f32 v{o+2*ft+1}, v{acc+2}, v{acc+3}")
        a.I(f"v_and_b32 v{o+2}, v{o+2}, v{pad}")
        a.I(f"v_and_b32 v{o+3}, v{o+3}, v{pad}")
        a.I(f"buffer_store_dwordx4 {vr(o,4)}, v{t0}, {srd(sWS)}, s{sOX if t == 1 else sOW} offen {ST}")
    return V.max


def lane_tr_addr(a, dst, t0, t1, bytes_extra_sreg, g1_stride, swz_shift, extra_swz_g1=0):
    pass


def mf32(a, d, A, B, C):
    a.I("v_mfma_f32_32x32x16_bf16 %s, %s, %s, %s" % (vr(d, 16), A, B, C))


def unpack8(a, dst, src):
    for k in range(4):
        a.I(f"v_lshlrev_b32 v{dst+2*k}, 16, v{src+k}")
        a.I(f"v_and_b32 v{dst+2*k+1}, 0xffff0000, v{src+k}")


def phase2(a, ST="", LD=""):
    V = RegAlloc("v", 2, 256)
    L = vLane
    OL = 114 * 1024
    t0, t1, t2, t3 = [V.alloc() for _ in range(4)]
    vdW, vLin, vA, vB, vXo = [V.alloc() for _ in range(5)]
    sRT, sCT, sNT, sT, sO, sL = 44, 45, 46, 47, 48, 49
    a.I(f"""
    s_lshr_b32 s{sRT}, s{sI}, 2
    s_lshl_b32 s{sT}, s{sG}, 3
    s_add_u32 s{sRT}, s{sRT}, s{sT}
    s_and_b32 s{sCT}, s{sI}, 3
    s_lshl_b32 s{sNT}, s{sCT}, 2
    s_add_u32 s{sNT}, s{sNT}, s{sW}
    v_lshlrev_b32 v{vLin}, 4, v{L}
    v_lshrrev_b32 v{t0}, 3, v{L}           ; r8
    v_and_b32 v{t1}, 7, v{L}
    v_and_b32 v{t2}, 2, v{t0}
    v_lshlrev_b32 v{t2}, 1, v{t2}          ; 4*bit1(r8)
    v_xor_b32 v{t1}, v{t1}, v{t2}
    v_mul_u32_u24 v{t0}, 896, v{t0}
    v_lshl_add_u32 v{vdW}, v{t1}, 4, v{t0}
    """)
    a.I(f"""
    s_lshl_b32 s{sO}, s{sRT}, 15
    s_lshl_b32 s{sL}, s{sW}, 13
    s_add_u32 s{sO}, s{sO}, s{sL}
    s_add_u32 s{sO}, s{sO}, {O_OFF}
    """)
    a.I(f"s_add_u32 m0, s{sL}, {OL}")
    for hb in range(2):
        if hb:
            a.I(f"s_add_u32 m0, s{sL}, {OL + 4096}\ns_add_u32 s{sO}, s{sO}, 4096")
        for j in range(4):
            a.I(f"buffer_load_dwordx4 v{vLin}, {srd(sWS)}, s{sO} offen offset:{j*1024} {LD} lds")
    a.I(f"""
    s_lshr_b32 s{sT}, s{sW}, 1
    s_mul_i32 s{sL}, s{sT}, {57*1024}
    s_lshl_b32 s{sO}, s{sT}, 7
    s_lshl_b32 s{sT}, s{sCT}, 8
    s_add_u32 s{sO}, s{sO}, s{sT}
    s_and_b32 s{sT}, s{sW}, 1
    s_mul_i32 s{sT}, s{sT}, {8*896}
    s_add_u32 s{sO}, s{sO}, s{sT}
    s_and_b32 s{sT}, s{sW}, 1
    s_lshl_b32 s{sT}, s{sT}, 10
    s_add_u32 s{sL}, s{sL}, s{sT}
    """)
    for n in range(28):
        tk = dma(a, vdW, sWO, f"s{sO}", (sL, n * 2048))
        a.I(f"s_add_u32 s{sO}, s{sO}, {16*896}")
    lab = a.newlabel("P2skip")
    a.I(f"s_bitcmp1_b32 s{sW}, 0\ns_cbranch_scc1 {lab}")
    dma(a, vdW, sWO, f"s{sO}", (sL, 28 * 2048), maybe=True)
    a.I(lab + ":")
    stamp(a)
    XR = V.alloc(8)
    acc = V.alloc(16)
    a.I(f"""
    v_and_b32 v{t0}, 31, v{L}
    v_lshrrev_b32 v{t1}, 5, v{L}          ; g2
    v_mul_u32_u24 v{vXo}, 896, v{t0}
    v_lshl_add_u32 v{vXo}, v{t1}, 4, v{vXo}
    s_mul_i32 s{sO}, s{sRT}, {32*896}
    s_lshl_b32 s{sT}, s{sNT}, 6
    s_add_u32 s{sO}, s{sO}, s{sT}
    buffer_load_dwordx4 {vr(XR,4)}, v{vXo}, {srd(sX)}, s{sO} offen
    buffer_load_dwordx4 {vr(XR+4,4)}, v{vXo}, {srd(sX)}, s{sO} offen offset:32
    ; B address
    v_lshrrev_b32 v{t2}, 4, v{t0}
    v_lshlrev_b32 v{t2}, 14, v{t2}
    v_and_b32 v{t0}, 15, v{t0}
    v_lshl_add_u32 v{t2}, v{t0}, 4, v{t2}
    v_lshl_add_u32 v{t2}, v{t1}, 8, v{t2}
    v_add_u32 v{vB}, {OL}, v{t2}
    v_bfe_u32 v{t0}, v{L}, 2, 2           ; r4
    v_lshl_add_u32 v{t2}, v{t1}, 2, v{t0}
    v_lshlrev_b32 v{t2}, 7, v{t2}
    v_and_b32 v{t0}, 2, v{t0}
    v_lshlrev_b32 v{t0}, 5, v{t0}         ; 64*bit1
    v_and_b32 v{t1}, 16, v{L}
    v_lshlrev_b32 v{t1}, 1, v{t1}         ; 32*(G&1)
    v_and_b32 v{t3}, 1, v{L}
    v_lshl_or_b32 v{t1}, v{t3}, 4, v{t1}
    v_and_b32 v{t3}, 2, v{L}
    v_lshl_or_b32 v{t1}, v{t3}, 2, v{t1}
    s_and_b32 s{sT}, s{sW}, 1
    s_lshl_b32 s{sT}, s{sT}, 6
    v_or_b32 v{t1}, s{sT}, v{t1}
    v_xor_b32 v{t1}, v{t1}, v{t0}
    s_lshr_b32 s{sT}, s{sW}, 1
    s_mul_i32 s{sT}, s{sT}, {57*1024}
    v_add3_u32 v{vA}, v{t1}, v{t2}, s{sT}
    """)
    unpack8(a, acc, XR)
    unpack8(a, acc + 8, XR + 4)
    a.waitcnt(vm=0)
    a.I("s_barrier")
    stamp(a)
    end = a.newlabel("P2end")
    a.I(f"s_cmp_ge_u32 s{sNT}, 14\ns_cbranch_scc1 {end}")
    NB = 6
    BF = [V.alloc(4) for _ in range(NB)]

    def rd(s):
        h, e = s >> 1, s & 1
        for j in range(2):
            a.I(f"ds_read_b64_tr_b16 {ar(4*s+2*j,2)}, v{vA} offset:{(28*h+16*j+8*e)*128}")
        a.I(f"ds_read_b128 {vr(BF[s % NB],4)}, v{vB} offset:{h*1024+e*512}")
    for s in range(4):
        rd(s)
    for s in range(32):
        mf32(a, acc, ar(4 * s, 4), vr(BF[s % NB], 4), vr(acc, 16))
        if s + 4 < 32:
            rd(s + 4)
    HP = V.alloc(8)
    stamp(a)
    a.I(f"""
    s_lshl_b32 s{sO}, s{sRT}, 15
    s_lshl_b32 s{sT}, s{sNT}, 11
    s_add_u32 s{sL}, s{sO}, s{sT}
    s_add_u32 s{sL}, s{sL}, {H_OFF}
    s_lshl_b32 s{sT}, s{sNT}, 8
    s_add_u32 s{sO}, s{sO}, s{sT}
    s_add_u32 s{sO}, s{sO}, {H_OFF + 28672}
    """)
    for k in range(8):
        a.I(f"v_cvt_pk_bf16_f32 v{HP+k}, v{acc+2*k}, v{acc+2*k+1}")
    a.I(f"buffer_store_dwordx4 {vr(HP,4)}, v{vLin}, {srd(sWS)}, s{sL} offen {ST}")
    a.I(f"buffer_store_dwordx4 {vr(HP+4,4)}, v{vLin}, {srd(sWS)}, s{sL} offen offset:1024 {ST}")
    sm, sq = V.alloc(2), V.alloc(2)
    st = V.alloc(2)
    a.I(f"v_pk_add_f32 {vr(sm,2)}, {vr(acc,2)}, {vr(acc+2,2)}")
    a.I(f"v_pk_mul_f32 {vr(sq,2)}, {vr(acc,2)}, {vr(acc,2)}")
    a.I(f"v_pk_fma_f32 {vr(sq,2)}, {vr(acc+2,2)}, {vr(acc+2,2)}, {vr(sq,2)}")
    for k in range(2, 8):
        a.I(f"v_pk_add_f32 {vr(sm,2)}, {vr(sm,2)}, {vr(acc+2*k,2)}")
        a.I(f"v_pk_fma_f32 {vr(sq,2)}, {vr(acc+2*k,2)}, {vr(acc+2*k,2)}, {vr(sq,2)}")
    a.I(f"""
    v_add_f32 v{st}, v{sm}, v{sm+1}
    v_add_f32 v{st+1}, v{sq}, v{sq+1}
    v_mov_b32 v{sm}, v{st}
    v_mov_b32 v{sm+1}, v{st+1}
    v_lshlrev_b32 v{t0}, 3, v{L}
    v_permlane32_swap_b32 v{st}, v{sm}
    v_permlane32_swap_b32 v{st+1}, v{sm+1}
    v_add_f32 v{st}, v{st}, v{sm}
    v_add_f32 v{st+1}, v{st+1}, v{sm+1}
    s_mov_b64 exec, 0xffffffff
    buffer_store_dwordx2 {vr(st,2)}, v{t0}, {srd(sWS)}, s{sO} offen {ST}
    s_mov_b64 exec, -1
    """)
    a.I(end + ":")
    return V.max


def phase3(a, ST="", LD=""):
    V = RegAlloc("v", 2, 256)
    L = vLane
    t0, t1, t2, t3 = [V.alloc() for _ in range(4)]
    vdG, vdU, vLin, vA, vSt = [V.alloc() for _ in range(5)]
    vBs = [V.alloc() for _ in range(3)]
    ones = V.alloc(4)
    sT, sO, sL, sRT, sHO, sFT, sN = 44, 45, 46, 47, 48, 49, 50
    a.I(f"""
    v_lshlrev_b32 v{vLin}, 4, v{L}
    v_lshrrev_b32 v{t0}, 3, v{L}           ; r8
    v_and_b32 v{t1}, 7, v{L}
    v_and_b32 v{t2}, 2, v{t0}
    v_xor_b32 v{t1}, v{t1}, v{t2}
    v_mul_u32_u24 v{t0}, 3584, v{t0}
    v_lshl_add_u32 v{vdG}, v{t1}, 4, v{t0}
    v_xor_b32 v{vdU}, 64, v{vdG}
    s_lshl_b32 s{sFT}, s{sI}, 2
    s_add_u32 s{sFT}, s{sFT}, s{sW}
    s_and_b32 s{sN}, s{sI}, 7
    s_lshl_b32 s{sL}, s{sW}, 13
    """)

    def slot_of(n):
        return (n + 4) % 5

    htok = {}

    def issue_h(n):
        a.I(f"""
        s_lshl_b32 s{sT}, s{sG}, 3
        s_add_u32 s{sT}, s{sT}, s{sN}
        s_lshl_b32 s{sHO}, s{sT}, 15
        s_add_u32 s{sHO}, s{sHO}, s{sL}
        s_add_u32 s{sHO}, s{sHO}, {H_OFF}
        s_add_u32 s{sN}, s{sN}, 1
        s_and_b32 s{sN}, s{sN}, 7
        """)
        for hb in range(2):
            a.I(f"s_add_u32 m0, s{sL}, {slot_of(n)*32768 + hb*4096}")
            if hb:
                a.I(f"s_add_u32 s{sHO}, s{sHO}, 4096")
            for j in range(4):
                tk = a.I(f"buffer_load_dwordx4 v{vLin}, {srd(sWS)}, s{sHO} offen offset:{j*1024} {LD} lds")
        htok[n] = tk

    a.I(f"""
    s_lshl_b32 s{sO}, s{sI}, 7
    s_mul_i32 s{sT}, s{sW}, {8*3584}
    s_add_u32 s{sO}, s{sO}, s{sT}
    s_lshl_b32 s{sRT}, s{sW}, 10
    """)
    for n in range(14):
        dma(a, vdG, sWG, f"s{sO}", (sRT, n * 4096))
        wt = dma(a, vdU, sWU, f"s{sO}", (sRT, 57344 + n * 4096))
        a.I(f"s_add_u32 s{sO}, s{sO}, {32*3584}")
    issue_h(0)
    a.I(f"""
    v_bfe_u32 v{t0}, v{L}, 2, 2           ; r4
    v_lshrrev_b32 v{t1}, 5, v{L}          ; g2
    v_lshl_add_u32 v{t2}, v{t1}, 3, v{t0}
    v_lshlrev_b32 v{t2}, 7, v{t2}
    v_and_b32 v{t0}, 2, v{t0}
    v_lshlrev_b32 v{t0}, 4, v{t0}         ; 32*bit1
    v_bfe_u32 v{t3}, v{L}, 4, 1           ; mat
    v_lshl_or_b32 v{t0}, v{t3}, 6, v{t0}
    v_mul_u32_u24 v{t3}, 57344, v{t3}
    v_add_u32 v{t2}, v{t2}, v{t3}
    v_and_b32 v{t3}, 1, v{L}
    v_lshlrev_b32 v{t1}, 4, v{t3}
    v_and_b32 v{t3}, 2, v{L}
    v_lshl_or_b32 v{t1}, v{t3}, 2, v{t1}
    s_lshl_b32 s{sT}, s{sW}, 5
    v_or_b32 v{t1}, s{sT}, v{t1}
    v_xor_b32 v{t1}, v{t1}, v{t0}
    v_add_u32 v{vA}, v{t1}, v{t2}
    v_mov_b32 v{vBs[0]}, v{vLin}
    v_add_u32 v{vBs[1]}, 65536, v{vLin}
    v_add_u32 v{vBs[2]}, 131072, v{vLin}
    v_lshlrev_b32 v{vSt}, 3, v{L}
    """)
    for k in range(4):
        a.I(f"v_mov_b32 v{ones+k}, 0x3f803f80")
    WF = V.alloc(112)
    stamp(a)
    a.wait_tok(wt)
    a.I("s_barrier")
    stamp(a)
    for ks in range(28):
        for j in range(2):
            a.I(f"ds_read_b64_tr_b16 {vr(WF+4*ks+2*j,2)}, v{vA} offset:{(16*ks+4*j)*128}")
    a.waitcnt(lgkm=0)
    a.I("s_barrier")
    stamp(a)
    for n in range(1, 4):
        issue_h(n)
    CS = V.alloc(16)
    for ks in range(28):
        mf32(a, CS, vr(WF + 4 * ks, 4), vr(ones, 4), "0" if ks == 0 else vr(CS, 16))
    ACC = [V.alloc(16) for _ in range(2)]
    NB = 6
    BF = [V.alloc(4) for _ in range(NB)]
    SS = V.alloc(14, 2)
    st = V.alloc(2)
    tp = V.alloc(2)
    nm, r2 = V.alloc(), V.alloc()
    HP = V.alloc(4)
    sRTo = 51
    a.I(f"s_and_b32 s{sRTo}, s{sI}, 7")

    def stats_code(n):
        sl = slot_of(n)
        out = []
        out.append(f"v_add_u32 v{t0}, {sl*32768+28672}, v{vSt}")
        for j in range(7):
            out.append(f"ds_read_b64 {vr(SS+2*j,2)}, v{t0} offset:{j*512}")
        out.append(f"v_add_f32 v{st}, v{SS}, v{SS+2}")
        out.append(f"v_add_f32 v{st+1}, v{SS+1}, v{SS+3}")
        for j in range(2, 7):
            out.append(f"v_add_f32 v{st}, v{st}, v{SS+2*j}")
            out.append(f"v_add_f32 v{st+1}, v{st+1}, v{SS+2*j+1}")
        out += [f"v_mov_b32 v{tp}, v{st}", f"v_mov_b32 v{tp+1}, v{st+1}",
                f"v_permlane32_swap_b32 v{st}, v{tp}", f"v_permlane32_swap_b32 v{st+1}, v{tp+1}",
                f"v_add_f32 v{st}, v{st}, v{tp}", f"v_add_f32 v{st+1}, v{st+1}, v{tp+1}",
                f"v_mul_f32 v{nm}, {f32(-1.0/448)}, v{st}",
                f"v_mul_f32 v{st+1}, {f32(1.0/448)}, v{st+1}",
                f"v_fma_f32 v{st+1}, -v{nm}, v{nm}, v{st+1}",
                f"v_max_f32 v{st+1}, 0, v{st+1}",
                f"v_add_f32 v{st+1}, {f32(1e-5)}, v{st+1}",
                f"v_rcp_f32 v{r2}, v{st+1}"]
        return out

    def epi_code(n):
        acc = ACC[n % 2]
        out = []
        for k in range(16):
            out.append(f"v_fma_f32 v{acc+k}, v{CS+k}, v{nm}, v{acc+k}")
        for k in range(8):
            out.append(f"v_max_f32 v{acc+k}, 0, v{acc+k}")
            out.append(f"v_mul_f32 v{acc+8+k}, v{acc+8+k}, v{r2}")
        for k in range(8):
            out.append(f"v_mul_f32 v{acc+k}, v{acc+k}, v{acc+8+k}")
        for k in range(4):
            out.append(f"v_cvt_pk_bf16_f32 v{HP+k}, v{acc+2*k}, v{acc+2*k+1}")
        out += [f"s_lshl_b32 s{sT}, s{sG}, 3", f"s_add_u32 s{sT}, s{sT}, s{sRTo}", f"s_mul_i32 s{sT}, s{sT}, 112",
                f"s_add_u32 s{sT}, s{sT}, s{sFT}", f"s_lshl_b32 s{sT}, s{sT}, 10", f"s_add_u32 s{sO}, s{sT}, {HID_OFF}",
                f"s_add_u32 s{sRTo}, s{sRTo}, 1", f"s_and_b32 s{sRTo}, s{sRTo}, 7",
                f"buffer_store_dwordx4 {vr(HP,4)}, v{vLin}, {srd(sWS)}, s{sO} offen {ST}"]
        return out

    for n in range(8):
        sl = slot_of(n)
        a.wait_tok(htok[n], lgkm=0)
        a.I("s_barrier")
        if n in (0, 1, 2, 4, 6, 7):
            stamp(a)

        def rd(ks):
            off = sl * 32768 + ks * 1024
            a.I(f"ds_read_b128 {vr(BF[ks % NB],4)}, v{vBs[off >> 16]} offset:{off & 65535}")
        for ks in range(4):
            rd(ks)
        if n >= 1 and n + 3 < 8:
            issue_h(n + 3)
        fill = (epi_code(n - 1) if n else []) + stats_code(n)
        acc = ACC[n % 2]
        for ks in range(28):
            mf32(a, acc, vr(WF + 4 * ks, 4), vr(BF[ks % NB], 4), "0" if ks == 0 else vr(acc, 16))
            if ks + 4 < 28:
                rd(ks + 4)
            if ks >= 1:
                for _ in range(4):
                    if fill:
                        a.I(fill.pop(0))
        while fill:
            a.I(fill.pop(0))
    for s in epi_code(7):
        a.I(s)
    return V.max


def phase4(a, LD=""):
    V = RegAlloc("v", 2, 256)
    L = vLane
    t0, t1, t2, t3 = [V.alloc() for _ in range(4)]
    vdW, vLin, vO = [V.alloc() for _ in range(3)]
    vA = [V.alloc() for _ in range(2)]
    sT, sO, sL, sMT, sNT, sRT0, sRT1, sB0, sB1, sN2 = 44, 45, 46, 47, 48, 49, 50, 51, 52, 53
    a.I(f"""
    s_mul_i32 s{sMT}, s{sI}, 37
    s_lshr_b32 s{sMT}, s{sMT}, 8           ; i/7
    s_mul_i32 s{sT}, s{sMT}, 7
    s_sub_u32 s{sNT}, s{sI}, s{sT}
    s_lshl_b32 s{sRT0}, s{sG}, 3
    s_lshl_b32 s{sT}, s{sMT}, 1
    s_add_u32 s{sRT0}, s{sRT0}, s{sT}
    s_lshr_b32 s{sT}, s{sW}, 1
    s_add_u32 s{sRT0}, s{sRT0}, s{sT}
    s_xor_b32 s{sRT1}, s{sRT0}, 1
    s_and_b32 s{sN2}, s{sW}, 1
    v_lshlrev_b32 v{vLin}, 4, v{L}
    v_lshrrev_b32 v{t0}, 3, v{L}           ; r8
    v_and_b32 v{t1}, 7, v{L}
    v_and_b32 v{t2}, 2, v{t0}
    v_lshlrev_b32 v{t2}, 1, v{t2}          ; 4*bit1(r8)
    v_xor_b32 v{t1}, v{t1}, v{t2}
    v_mul_u32_u24 v{t0}, 896, v{t0}
    v_lshl_add_u32 v{vdW}, v{t1}, 4, v{t0}
    s_mul_i32 s{sO}, s{sW}, {448*896}
    s_lshl_b32 s{sT}, s{sNT}, 7
    s_add_u32 s{sO}, s{sO}, s{sT}
    s_mul_i32 s{sL}, s{sW}, 40960
    s_mul_i32 s{sT}, s{sW}, 28
    s_mul_i32 s{sB0}, s{sRT0}, 112
    s_add_u32 s{sB0}, s{sB0}, s{sT}
    s_lshl_b32 s{sB0}, s{sB0}, 10
    s_add_u32 s{sB0}, s{sB0}, {HID_OFF}
    s_mul_i32 s{sB1}, s{sRT1}, 112
    s_add_u32 s{sB1}, s{sB1}, s{sT}
    s_lshl_b32 s{sB1}, s{sB1}, 10
    s_add_u32 s{sB1}, s{sB1}, {HID_OFF}
    """)
    HR = V.alloc(8)
    ACC = {(m, n): V.alloc(16) for m in range(2) for n in range(2)}
    a.I(f"""
    s_lshl_b32 s{sT}, s{sNT}, 1
    s_add_u32 s{sT}, s{sT}, s{sN2}
    s_lshl_b32 s{sT}, s{sT}, 11
    s_lshl_b32 s54, s{sRT0}, 15
    s_add_u32 s54, s54, s{sT}
    s_add_u32 s54, s54, {H_OFF}
    buffer_load_dwordx4 {vr(HR,4)}, v{vLin}, {srd(sWS)}, s54 offen {LD}
    buffer_load_dwordx4 {vr(HR+4,4)}, v{vLin}, {srd(sWS)}, s54 offen offset:1024 {LD}
    """)
    NBK = 20
    BF = [[V.alloc(4) for m in range(2)] for _ in range(NBK)]
    RW = 20
    wtok = {}

    def issue(ks):
        for j in range(2):
            wtok[ks] = dma(a, vdW, sWD, f"s{sO}", (sL, (ks % RW) * 2048 + j * 1024))
            a.I(f"s_add_u32 s{sO}, s{sO}, {8*896}")
        a.I(f"buffer_load_dwordx4 {vr(BF[ks % NBK][0],4)}, v{vLin}, {srd(sWS)}, s{sB0} offen offset:{(ks%4)*1024} {LD}")
        a.I(f"buffer_load_dwordx4 {vr(BF[ks % NBK][1],4)}, v{vLin}, {srd(sWS)}, s{sB1} offen offset:{(ks%4)*1024} {LD}")
        if ks % 4 == 3:
            a.I(f"s_add_u32 s{sB0}, s{sB0}, 4096\ns_add_u32 s{sB1}, s{sB1}, 4096")
    PRE = 15
    for ks in range(PRE):
        issue(ks)
    a.I(f"""
    v_bfe_u32 v{t0}, v{L}, 2, 2           ; r4
    v_lshrrev_b32 v{t1}, 5, v{L}          ; g2
    v_lshl_add_u32 v{t2}, v{t1}, 3, v{t0}
    v_lshlrev_b32 v{t2}, 7, v{t2}
    v_and_b32 v{t0}, 2, v{t0}
    v_lshlrev_b32 v{t0}, 5, v{t0}         ; 64*bit1
    v_and_b32 v{t1}, 16, v{L}
    v_lshlrev_b32 v{t1}, 1, v{t1}         ; 32*(G&1)
    v_and_b32 v{t3}, 1, v{L}
    v_lshl_or_b32 v{t1}, v{t3}, 4, v{t1}
    v_and_b32 v{t3}, 2, v{L}
    v_lshl_or_b32 v{t1}, v{t3}, 2, v{t1}
    s_lshl_b32 s{sT}, s{sN2}, 6
    v_or_b32 v{t1}, s{sT}, v{t1}
    v_xor_b32 v{t1}, v{t1}, v{t0}
    v_add3_u32 v{vA[0]}, v{t1}, v{t2}, s{sL}
    v_xor_b32 v{vA[1]}, 64, v{vA[0]}
    v_and_b32 v{t0}, 31, v{L}
    v_lshrrev_b32 v{t1}, 5, v{L}
    v_mul_u32_u24 v{vO}, 896, v{t0}
    v_lshl_add_u32 v{vO}, v{t1}, 4, v{vO}
    """)
    unpack8(a, ACC[(0, 0)], HR)
    unpack8(a, ACC[(0, 0)] + 8, HR + 4)

    def rdA(ks):
        a.wait_tok(wtok[ks])
        for n in range(2):
            for j in range(2):
                a.I(f"ds_read_b64_tr_b16 {ar(8*ks+4*n+2*j,2)}, v{vA[n]} offset:{(ks % RW)*2048 + j*512}")
    stamp(a)
    rdA(0)
    stamp(a)
    for ks in range(28):
        if ks in (4, 10, 16, 22):
            stamp(a)
        if ks + 1 < 28:
            rdA(ks + 1)
        for m in range(2):
            for n in range(2):
                acc = ACC[(m, n)]
                c = "0" if (ks == 0 and (m, n) != (0, 0)) else vr(acc, 16)
                mf32(a, acc, ar(8 * ks + 4 * n, 4), vr(BF[ks % NBK][m], 4), c)
        if ks + PRE < 28:
            issue(ks + PRE)
    stamp(a)
    a.waitcnt(lgkm=0)
    a.I("s_barrier")
    for u in (1, 2, 3):
        acc = ACC[(u >> 1, u & 1)]
        a.I(f"s_xor_b32 s{sT}, s{sW}, {u}\ns_mul_i32 s{sT}, s{sT}, 12288\nv_add_u32 v{t0}, s{sT}, v{vLin}")
        for k in range(4):
            a.I(f"ds_write_b128 v{t0}, {vr(acc+4*k,4)} offset:{(u-1)*4096 + k*1024}")
    a.I(f"s_mul_i32 s{sT}, s{sW}, 12288\nv_add_u32 v{t0}, s{sT}, v{vLin}")
    a.waitcnt(lgkm=0)
    a.I("s_barrier")
    for u in (1, 2, 3):
        acc = ACC[(u >> 1, u & 1)]
        for k in range(4):
            a.I(f"ds_read_b128 {vr(acc+4*k,4)}, v{t0} offset:{(u-1)*4096 + k*1024}")
    o = ACC[(0, 0)]
    stamp(a)
    for u in (1, 2, 3):
        acc = ACC[(u >> 1, u & 1)]
        for k in range(8):
            a.I(f"v_pk_add_f32 {vr(o+2*k,2)}, {vr(o+2*k,2)}, {vr(acc+2*k,2)}")
    for k in range(8):
        a.I(f"v_cvt_pk_bf16_f32 v{HR+k}, v{o+2*k}, v{o+2*k+1}")
    a.I(f"""
    s_mul_i32 s{sO}, s{sRT0}, {32*896}
    s_lshl_b32 s{sT}, s{sNT}, 7
    s_add_u32 s{sO}, s{sO}, s{sT}
    s_lshl_b32 s{sT}, s{sN2}, 6
    s_add_u32 s{sO}, s{sO}, s{sT}
    buffer_store_dwordx4 {vr(HR,4)}, v{vO}, {srd(sOUT)}, s{sO} offen
    buffer_store_dwordx4 {vr(HR+4,4)}, v{vO}, {srd(sOUT)}, s{sO} offen offset:32
    """)
    return V.max


def desc(name):
    return f""".amdhsa_kernel {name}
  .amdhsa_next_free_vgpr 512
  .amdhsa_next_free_sgpr 102
  .amdhsa_accum_offset 256
  .amdhsa_group_segment_fixed_size 0
  .amdhsa_kernarg_size 80
  .amdhsa_user_sgpr_count 2
  .amdhsa_user_sgpr_kernarg_segment_ptr 1
  .amdhsa_system_sgpr_workgroup_id_x 1
.end_amdhsa_kernel"""


def main(out, extra_empty=0):
    a = Asm()
    ks = [("p1_kernel", ["x", "wq", "ws"], 32, phase1), ("p2_kernel", ["x", "wo", "ws"], 32, phase2),
          ("p3_kernel", ["wg", "wu", "ws"], 28, phase3), ("p4_kernel", ["wd", "out", "ws"], 28, phase4)]
    for name, bufs, n, fn in ks:
        a.raw(f"; @launch kernel={name} grid=({n*8},1,1) block=(256,1,1) lds={LDS}")
    for e in range(extra_empty):
        a.raw(f"; @launch kernel=empty_kernel grid=(256,1,1) block=(256,1,1) lds=0")
    a.raw('.amdgcn_target "amdgcn-amd-amdhsa--gfx950"\n.text')
    for name, bufs, n, fn in ks:
        prologue(a, name, bufs, n)
        mx = fn(a)
        epilogue(a, name)
        print(name, "max vgpr", mx, file=sys.stderr)
    if extra_empty:
        a.raw(".globl empty_kernel\n.p2align 8\n.type empty_kernel,@function\nempty_kernel:\ns_endpgm")
    a.raw('.section .rodata,"a"')
    for name, *_ in ks:
        a.raw(".p2align 6\n" + desc(name))
    if extra_empty:
        a.raw(".p2align 6\n" + desc("empty_kernel"))
    bad = a.verify()
    assert not bad, bad
    open(out, "w").write(a.text())


if __name__ == "__main__":
    STAMPS = len(sys.argv) > 3
    main(sys.argv[1], int(sys.argv[2]) if len(sys.argv) > 2 else 0)
```
